```python
import torch

def _softmax(x, axis=-1):
    return torch.softmax(x, dim=axis)
def _gelu(x):
    return torch.nn.functional.gelu(x, approximate="tanh")
def _silu(x):
    return torch.nn.functional.silu(x)
def _sigmoid(x):
    return torch.sigmoid(x)
def _layernorm(x, axis=-1, eps=1e-5):
    m = x.mean(dim=axis, keepdim=True)
    v = x.var(dim=axis, keepdim=True, unbiased=False)
    return (x - m) / torch.sqrt(v + eps)
def _scatter_add(tgt, idx, src, axis=0):
    return tgt.clone().index_add_(axis, idx, src)
def _segment_sum(src, seg, n):
    out = torch.zeros((n,) + src.shape[1:], dtype=src.dtype)
    return out.index_add_(0, seg, src)
def _pad(x, pw):
    flat = tuple(v for pair in reversed(pw) for v in pair)
    return torch.nn.functional.pad(x, flat)

kernel_name = 'standalone__gqa_softmax__near_ridge'

def setup_inputs():

    _w = (lambda a: (lambda t: t.to(torch.bfloat16) if t.is_floating_point() else t)(torch.as_tensor(a)))
    B, Hq, Hkv, Sq, Sk, D = 8, 32, 4, 32, 2048, 128
    return {
        "q": _w((lambda *s: torch.randn(*s, dtype=torch.bfloat16) * 0.8)(B, Hq, Sq, D)),
        "k": _w((lambda *s: torch.randn(*s, dtype=torch.bfloat16) * 0.8)(B, Hkv, Sk, D)),
        "v": _w((lambda *s: torch.randn(*s, dtype=torch.bfloat16) * 0.05)(B, Hkv, Sk, D)),
    }

def reference(q, k, v):
    B, Hq, Sq, D = q.shape
    Hkv = k.shape[1]
    rep = Hq // Hkv
    k = (lambda x, n, axis: torch.repeat_interleave(x, n, dim=axis))(k, rep, axis=1)
    v = (lambda x, n, axis: torch.repeat_interleave(x, n, dim=axis))(v, rep, axis=1)
    scale = D ** -0.5
    scores = torch.einsum("bhqd,bhkd->bhqk", q, k) * scale
    p = _softmax(scores, axis=-1)
    return torch.einsum("bhqk,bhkd->bhqd", p, v)
```

```python
import re

TRANS = ("v_exp_f32", "v_log_f32", "v_rcp_f32", "v_rsq_f32", "v_sqrt_f32", "v_sin_f32", "v_cos_f32")


def regs_of(tok):
    tok = tok.strip()
    tok = tok.lstrip("-")
    m = re.fullmatch(r"abs\((.*)\)", tok)
    if m:
        tok = m.group(1)
    m = re.fullmatch(r"\|(.*)\|", tok)
    if m:
        tok = m.group(1)
    m = re.fullmatch(r"([vsa])(\d+)", tok)
    if m:
        return [(m.group(1), int(m.group(2)))]
    m = re.fullmatch(r"([vsa])\[(\d+):(\d+)\]", tok)
    if m:
        return [(m.group(1), i) for i in range(int(m.group(2)), int(m.group(3)) + 1)]
    if tok == "vcc":
        return [("s", 106), ("s", 107)]
    if tok == "vcc_lo":
        return [("s", 106)]
    if tok == "vcc_hi":
        return [("s", 107)]
    if tok == "m0":
        return [("m", 0)]
    if tok == "exec":
        return [("e", 0)]
    return []


class Ins:
    __slots__ = ("text", "op", "kind", "rd", "wr", "srcc", "passes", "ws", "storedata", "lds_dma")

    def __init__(self, text):
        self.text = text
        self.op = ""
        self.kind = "other"
        self.rd = set()
        self.wr = set()
        self.srcc = set()
        self.passes = 0
        self.ws = 1
        self.storedata = set()
        self.lds_dma = False


def split_ops(s):
    out, depth, cur = [], 0, ""
    for ch in s:
        if ch in "[(":
            depth += 1
        if ch in "])":
            depth -= 1
        if ch == "," and depth == 0:
            out.append(cur.strip())
            cur = ""
        else:
            cur += ch
    if cur.strip():
        out.append(cur.strip())
    res = []
    for o in out:
        res.append(o.split()[0] if o.split() else o)
    return res, out


def parse(text):
    ins = Ins(text)
    t = text.split(";")[0].strip()
    if not t:
        ins.kind = "comment"
        ins.ws = 0
        return ins
    if t.endswith(":") or t.startswith("."):
        ins.kind = "label"
        ins.ws = 0
        return ins
    parts = t.split(None, 1)
    op = parts[0]
    ins.op = op
    ops, raw = split_ops(parts[1]) if len(parts) > 1 else ([], [])
    R = lambda i: set(regs_of(ops[i])) if i < len(ops) else set()
    if op == "s_nop":
        ins.kind = "nop"
        ins.ws = int(ops[0], 0) + 1
    elif op.startswith("v_mfma"):
        ins.kind = "mfma"
        ins.wr = R(0)
        ins.rd = R(1) | R(2) | R(3)
        ins.srcc = R(3)
        ins.passes = 8 if "32x32" in op else 4
    elif op.startswith("v_cmp"):
        ins.kind = "valu"
        ins.wr = R(0)
        ins.rd = R(1) | R(2)
    elif op in ("v_readfirstlane_b32", "v_readlane_b32"):
        ins.kind = "valu"
        ins.wr = R(0)
        ins.rd = R(1) | R(2)
    elif op.startswith("v_permlane"):
        ins.kind = "valu"
        ins.wr = R(0) | R(1)
        ins.rd = R(0) | R(1)
    elif op.startswith("v_"):
        ins.kind = "trans" if op.replace("_e32", "").replace("_e64", "") in TRANS else "valu"
        ins.wr = R(0)
        k0 = 1
        if op.startswith(("v_add_co", "v_sub_co", "v_addc_co", "v_subb_co")):
            ins.wr |= R(1)
            k0 = 2
        for i in range(k0, len(ops)):
            ins.rd |= R(i)
        if op.startswith(("v_fmac", "v_dot2c", "v_writelane")):
            ins.rd |= R(0)
        if op.startswith("v_cndmask") and len(ops) == 3:
            ins.rd |= set(regs_of("vcc"))
    elif op.startswith("ds_"):
        ins.kind = "ds"
        if op.startswith(("ds_read", "ds_bpermute", "ds_permute", "ds_swizzle")):
            ins.wr = R(0)
            for i in range(1, len(ops)):
                ins.rd |= R(i)
        else:
            for i in range(len(ops)):
                ins.rd |= R(i)
    elif op.startswith(("buffer_", "global_")):
        ins.kind = "vmem"
        islds = " lds" in (" " + t) or "_lds_" in op
        if "load" in op and not islds:
            ins.wr = R(0)
            for i in range(1, len(ops)):
                ins.rd |= R(i)
        else:
            for i in range(len(ops)):
                ins.rd |= R(i)
            if islds:
                ins.lds_dma = True
                ins.rd |= {("m", 0)}
            if "store" in op and ("x3" in op or "x4" in op):
                ins.storedata = R(0) if op.startswith("buffer_") else R(1)
    elif op.startswith("s_"):
        ins.kind = "salu"
        if op.startswith(("s_cmp", "s_bitcmp", "s_waitcnt", "s_barrier", "s_branch", "s_cbranch",
                          "s_sleep", "s_setprio", "s_endpgm")):
            for i in range(len(ops)):
                ins.rd |= R(i)
        else:
            ins.wr = R(0)
            for i in range(1, len(ops)):
                ins.rd |= R(i)
    return ins


def isv(r):
    return r[0] in ("v", "a")


def need(prod, cons):
    n = 0
    pv = prod.kind in ("valu", "trans")
    if pv:
        vw = {r for r in prod.wr if isv(r)}
        sw = {r for r in prod.wr if r[0] == "s"}
        if cons.kind == "mfma" and vw & cons.rd:
            n = max(n, 2)
        if cons.op.startswith("v_permlane") and vw & cons.rd:
            n = max(n, 2)
        if "dpp" in cons.text and vw & cons.rd:
            n = max(n, 2)
        if cons.op in ("v_readfirstlane_b32", "v_readlane_b32") and vw & cons.rd:
            n = max(n, 1)
        if prod.kind == "trans" and cons.kind in ("valu",) and vw & cons.rd:
            n = max(n, 1)
        if prod.kind == "trans" and cons.kind in ("ds", "vmem") and vw & cons.rd:
            n = max(n, 1)
        if sw:
            if cons.kind in ("valu", "trans") and sw & cons.rd:
                n = max(n, 4 if cons.op in ("v_readlane_b32", "v_writelane_b32") else 2)
            if cons.kind == "vmem" and sw & cons.rd:
                n = max(n, 5)
            if cons.kind == "salu" and sw & cons.rd:
                n = max(n, 2)
    if prod.kind == "mfma":
        big = {2: 5, 4: 8, 8: 12, 16: 20}[prod.passes]
        if cons.kind == "mfma":
            ab = cons.rd - cons.srcc if not (cons.srcc & cons.rd - cons.srcc) else cons.rd
            abset = set()
            ops, _ = split_ops(cons.text.split(";")[0].strip().split(None, 1)[1])
            abset = set(regs_of(ops[1])) | set(regs_of(ops[2]))
            if prod.wr & abset:
                n = max(n, big)
            if prod.wr & cons.srcc:
                if prod.wr == cons.srcc and prod.passes == cons.passes:
                    n = max(n, 2 if prod.passes == 2 else 0)
                else:
                    n = max(n, {2: 4, 4: 6, 8: 10, 16: 18}[prod.passes])
            elif prod.wr & cons.wr:
                n = max(n, big)
        elif cons.kind in ("valu", "trans"):
            if prod.wr & (cons.rd | cons.wr):
                n = max(n, big)
            if prod.srcc & cons.wr:
                n = max(n, {2: 1, 4: 3, 8: 7, 16: 15}[prod.passes])
        elif cons.kind in ("ds", "vmem"):
            if prod.wr & (cons.rd | cons.wr):
                n = max(n, big)
            if prod.srcc & cons.wr:
                n = max(n, {2: 1, 4: 3, 8: 7, 16: 15}[prod.passes])
    if prod.kind == "salu" and ("m", 0) in prod.wr and cons.lds_dma:
        n = max(n, 1)
    if prod.storedata and (prod.storedata & cons.wr):
        n = max(n, 2)
    return n


class Asm:
    def __init__(self):
        self.ins = []

    def __call__(self, text):
        for line in text.strip("\n").split("\n"):
            self.ins.append(parse(line.strip()))

    def fence(self, n=None):
        self.ins.append(parse("; FENCE"))
        self.ins[-1].kind = "fence"
        self.ins[-1].ws = 0

    def finish(self):
        out = []
        nnops = 0
        for ins in self.ins:
            if ins.kind == "fence":
                dist = 0
                req = 0
                for p in reversed(out):
                    if dist >= 20:
                        break
                    if p.kind == "mfma":
                        req = max(req, {2: 5, 4: 8, 8: 12, 16: 20}[p.passes] - dist)
                    elif p.kind in ("valu", "trans"):
                        req = max(req, 5 - dist)
                    elif p.kind in ("salu", "vmem"):
                        req = max(req, 2 - dist)
                    dist += p.ws
                while req > 0:
                    k = min(req, 16)
                    out.append(parse("s_nop %d" % (k - 1)))
                    nnops += 1
                    req -= k
                continue
            if ins.kind in ("comment", "label"):
                out.append(ins)
                continue
            dist = 0
            req = 0
            for p in reversed(out):
                if dist >= 20:
                    break
                if p.kind not in ("comment", "label", "nop"):
                    r = need(p, ins)
                    if r - dist > req:
                        req = r - dist
                dist += p.ws
            while req > 0:
                k = min(req, 16)
                out.append(parse("s_nop %d" % (k - 1)))
                nnops += 1
                req -= k
            out.append(ins)
        self.nnops = nnops
        lines = []
        for i in out:
            if i.kind == "label" and i.text.endswith(":"):
                lines.append(i.text)
            else:
                lines.append("    " + i.text)
        return "\n".join(lines) + "\n"
```

```python
import sys, struct, math
from asmlib import Asm

NAME = "standalone__gqa_softmax__near_ridge"
STAMP = "--stamp" in sys.argv
OUT = [a for a in sys.argv[1:] if not a.startswith("--")]
OUT = OUT[0] if OUT else "cdna_kernels/%s.s" % NAME

SCALE = (128 ** -0.5) * math.log2(math.e)
SCALE_BITS = struct.unpack("<I", struct.pack("<f", SCALE))[0]

MSG = 8192
ML_OFF = 4096
FLAG_OFF = 6144
STAMP_BASE = 64 << 20

a = Asm()

def S(j, i=None):
    return "v%d" % (16 * j + i) if i is not None else "v[%d:%d]" % (16 * j, 16 * j + 15)
def vr(b, n):
    return "v[%d:%d]" % (b, b + n - 1)
QF = 128
OA = 128
FB = 160
PP = 192
KA = 200
VA = 208
VOFFK, VOFFV = 212, 213
VMAX = 214
VL = 215
RINGW, RINGR = 216, 217
MW, MR = 218, 219
LANE = 220
VFLAG = 221
VDBG = 222
T0 = 224

sW, sP, sS, sQG, sQT, sH = 40, 41, 42, 43, 44, 45
sKB, sQB, sM0B, sT, sC, sG, sD, sBYTE = 46, 47, 48, 49, 50, 51, 52, 53
sT2, sT3, sT4 = 54, 55, 56
sSTAMP = 60

SRD_K, SRD_V, SRD_Q, SRD_O, SRD_W, SRD_D = "s[16:19]", "s[20:23]", "s[24:27]", "s[28:31]", "s[32:35]", "s[36:39]"

vm = []
def vmem(tag, text):
    a(text)
    vm.append(tag)
def waitvm_n(tag):
    idx = max(i for i, t in enumerate(vm) if t == tag)
    return len(vm) - 1 - idx

nstamp = [0]
def stamp():
    if STAMP:
        a("s_memrealtime s[%d:%d]" % (sSTAMP + 2 * nstamp[0], sSTAMP + 2 * nstamp[0] + 1))
        nstamp[0] += 1

def dma(tag, srd, voff, sbase, off, slot):
    a("s_add_u32 s%d, s%d, 0x%x" % (sT, sbase, off))
    a("s_add_u32 m0, s%d, 0x%x" % (sM0B, slot * 8192))
    vmem(tag, "buffer_load_dwordx4 v%d, %s, s%d offen lds" % (voff, srd, sT))

def vslot(t):
    return 16 + t if t < 4 else t - 4

a("s_cmp_ge_u32 s2, 0x100")
a("s_cbranch_scc1 L_end")
a("s_load_dwordx8 s[4:11], s[0:1], 0")
a("s_load_dwordx4 s[12:15], s[0:1], 32")
stamp()
a("v_lshrrev_b32 v1, 6, v0")
a("v_and_b32 v%d, 63, v0" % LANE)
a("v_readfirstlane_b32 s%d, v1" % sW)
a("s_and_b32 s%d, s2, 7" % sT)
a("s_lshr_b32 s%d, s2, 3" % sT2)
a("s_lshl_b32 s%d, s%d, 2" % (sP, sT))
a("s_lshr_b32 s%d, s%d, 3" % (sT3, sT2))
a("s_add_u32 s%d, s%d, s%d" % (sP, sP, sT3))
a("s_and_b32 s%d, s%d, 3" % (sS, sT2))
a("s_bfe_u32 s%d, s%d, 0x10002" % (sQG, sT2))
a("s_lshr_b32 s%d, s%d, 1" % (sQT, sW))
a("s_and_b32 s%d, s%d, 1" % (sH, sW))
a("s_lshl_b32 s%d, s%d, 19" % (sKB, sP))
a("s_lshl_b32 s%d, s%d, 17" % (sT, sS))
a("s_add_u32 s%d, s%d, s%d" % (sKB, sKB, sT))
a("s_lshl_b32 s%d, s%d, 1" % (sG, sP))
a("s_add_u32 s%d, s%d, s%d" % (sG, sG, sQG))
a("s_lshl_b32 s%d, s%d, 15" % (sQB, sG))
a("s_lshl_b32 s%d, s%d, 2" % (sD, sG))
a("s_add_u32 s%d, s%d, s%d" % (sD, sD, sS))
a("s_lshl_b32 s%d, s%d, 10" % (sM0B, sW))
a("s_mov_b32 s%d, 0x%08x" % (sC, SCALE_BITS))
a("v_lshrrev_b32 v1, 4, v%d" % LANE)
a("s_lshl_b32 s%d, s%d, 2" % (sT, sW))
a("v_add_u32 v1, s%d, v1" % sT)
a("v_and_b32 v2, 15, v%d" % LANE)
a("v_and_b32 v3, 15, v1")
a("v_xor_b32 v3, v2, v3")
a("v_lshlrev_b32 v3, 4, v3")
a("v_lshl_add_u32 v%d, v1, 8, v3" % VOFFK)
a("v_and_b32 v3, 3, v1")
a("v_lshlrev_b32 v3, 2, v3")
a("v_xor_b32 v3, v2, v3")
a("v_lshlrev_b32 v3, 4, v3")
a("v_lshl_add_u32 v%d, v1, 8, v3" % VOFFV)
a("v_and_b32 v4, 7, v%d" % LANE)
a("v_lshlrev_b32 v4, 13, v4")
a("s_lshl_b32 s%d, s%d, 16" % (sT2, sD))
a("s_add_u32 s%d, s%d, 0x%x" % (sT2, sT2, FLAG_OFF))
a("s_waitcnt lgkmcnt(0)")
for srd, ptr, size in ((16, 6, 16 << 20), (20, 8, 16 << 20), (24, 4, 2 << 20), (28, 10, 2 << 20), (32, 14, 256 << 20), (36, 12, 256)):
    a("s_mov_b32 s%d, s%d" % (srd, ptr))
    a("s_and_b32 s%d, s%d, 0xffff" % (srd + 1, ptr + 1))
    a("s_mov_b32 s%d, 0x%x" % (srd + 2, size))
    a("s_mov_b32 s%d, 0x20000" % (srd + 3))
dma("K0", SRD_K, VOFFK, sKB, 0, 0)
dma("K1", SRD_K, VOFFK, sKB, 8192, 1)
for x in range(4):
    dma("Q%d" % x, SRD_Q, VOFFK, sQB, x * 8192, 16 + x)
vmem("F", "buffer_load_dword v%d, v4, %s, s%d offen sc1" % (VFLAG, SRD_W, sT2))
for t in range(2, 16):
    dma("K%d" % t, SRD_K, VOFFK, sKB, t * 8192, t)
stamp()
a("v_and_b32 v1, 31, v%d" % LANE)
a("v_lshrrev_b32 v2, 5, v%d" % LANE)
a("v_and_b32 v3, 15, v1")
a("v_xor_b32 v3, v2, v3")
a("v_lshlrev_b32 v3, 4, v3")
a("v_lshl_add_u32 v3, v1, 8, v3")
a("s_lshl_b32 s%d, s%d, 13" % (sT, sH))
a("s_lshl_b32 s%d, s%d, 13" % (sT2, sQT))
a("s_add_u32 s%d, s%d, 0x20000" % (sT2, sT2))
for ks in range(8):
    a("v_xor_b32 v5, 0x%x, v3" % (ks << 5))
    a("v_add_u32 v%d, s%d, v5" % (KA + ks, sT))
    a("v_add_u32 v%d, s%d, v5" % (T0 + ks, sT2))
a("v_and_b32 v1, 15, v%d" % LANE)
a("v_lshrrev_b32 v3, 2, v1")
a("v_lshl_add_u32 v4, v2, 2, v3")
a("v_lshlrev_b32 v4, 8, v4")
a("v_bfe_u32 v5, v%d, 4, 1" % LANE)
a("v_lshl_add_u32 v4, v5, 5, v4")
a("v_and_b32 v5, 3, v1")
a("v_lshl_add_u32 v4, v5, 3, v4")
a("s_lshl_b32 s%d, s%d, 1" % (sT2, sH))
a("s_lshl_b32 s%d, s%d, 13" % (sT, sH))
a("s_xor_b32 s%d, s%d, 0x2000" % (sT3, sT))
a("s_add_u32 s%d, s%d, 0x20000" % (sT, sT))
a("s_add_u32 s%d, s%d, 0x20000" % (sT3, sT3))
for e in range(2):
    a("v_xor_b32 v5, s%d, v3" % sT2)
    if e:
        a("v_xor_b32 v5, 1, v5")
    a("v_lshl_add_u32 v5, v5, 6, v4")
    a("v_add_u32 v%d, s%d, v5" % (VA + e, sT))
    a("v_add_u32 v%d, s%d, v5" % (VA + 2 + e, sT3))
a("v_lshlrev_b32 v1, 4, v%d" % LANE)
a("s_lshl_b32 s%d, s%d, 11" % (sT, sW))
a("s_add_u32 s%d, s%d, 0x%x" % (sT, sT, 98304))
a("s_xor_b32 s%d, s%d, 0x800" % (sT2, sT))
a("v_add_u32 v%d, s%d, v1" % (RINGW, sT))
a("v_add_u32 v%d, s%d, v1" % (RINGR, sT2))
a("v_lshlrev_b32 v1, 2, v%d" % LANE)
a("s_lshl_b32 s%d, s%d, 8" % (sT, sW))
a("s_add_u32 s%d, s%d, 0x%x" % (sT, sT, 98304))
a("v_add_u32 v%d, s%d, v1" % (MW, sT))
a("v_and_b32 v1, 0x7c, v1")
a("s_andn2_b32 s%d, s%d, 0x100" % (sT, sT))
a("v_add_u32 v%d, s%d, v1" % (MR, sT))
a("v_mov_b32 v%d, 0xff800000" % VMAX)
a("v_mov_b32 v%d, 0" % VL)

def maxops(j):
    return ["v_max3_f32 v%d, v%d, %s, %s" % (VMAX, VMAX, S(j, 2 * i), S(j, 2 * i + 1)) for i in range(8)]

for j in range(8):
    need = "K%d" % (2 * j + 1) if j else "F"
    a("s_waitcnt vmcnt(%d) lgkmcnt(0)" % waitvm_n(need))
    a("s_barrier")
    if j == 0:
        stamp()
    if j == 4:
        for ks in range(8):
            a("v_add_u32 v%d, 0x10000, v%d" % (KA + ks, KA + ks))
    nds = 0
    if j == 0:
        for ks in range(8):
            a("ds_read_b128 %s, v%d" % (vr(QF + 4 * ks, 4), T0 + ks))
            a("ds_read_b128 %s, v%d offset:%d" % (vr(FB + 4 * ks, 4), KA + ks, (j & 3) * 16384))
    else:
        for ks in range(8):
            a("ds_read_b128 %s, v%d offset:%d" % (vr(FB + 4 * ks, 4), KA + ks, (j & 3) * 16384))
    fill = []
    if j == 1:
        fill = list(range(0, 6))
    elif 2 <= j <= 6:
        fill = [2 * j + 2, 2 * j + 3]
    for t in fill:
        dma("V%d" % t, SRD_V, VOFFV, sKB, t * 8192, vslot(t))
    if j == 0:
        a("v_and_b32 v%d, 1, v%d" % (VFLAG, VFLAG))
        a("v_cmp_eq_u32 vcc, 0, v%d" % VFLAG)
        a("s_lshl_b32 s%d, 0x11, s%d" % (sT2, sS))
        a("s_and_b32 s%d, vcc_lo, 0xff" % sBYTE)
        a("s_or_b32 s%d, s%d, s%d" % (sBYTE, sBYTE, sT2))
        a("s_cmp_lg_u32 s%d, 0" % sW)
        a("s_cbranch_scc1 L_nopub")
        a("v_mov_b32 v%d, s%d" % (T0 + 8, sBYTE))
        a("v_mov_b32 v%d, s%d" % (T0 + 9, sD))
        a("s_mov_b64 exec, 1")
        a("buffer_store_byte v%d, v%d, %s, 0 offen sc1" % (T0 + 8, T0 + 9, SRD_D))
        a("s_mov_b64 exec, -1")
        a("s_branch L_pub")
        a("L_nopub:")
        a("s_mov_b64 exec, 1")
        a("buffer_load_dword v%d, v%d, %s, 0 offen sc1" % (T0 + 8, LANE, SRD_D))
        a("s_mov_b64 exec, -1")
        a("L_pub:")
        vm.append("PUB")
    mx = maxops(j - 1) if j else []
    for ks in range(8):
        if j == 0:
            a("s_waitcnt lgkmcnt(%d)" % (14 - 2 * ks))
        else:
            a("s_waitcnt lgkmcnt(%d)" % (7 - ks))
        a("v_mfma_f32_32x32x16_bf16 %s, %s, %s, %s" % (S(j), vr(FB + 4 * ks, 4), vr(QF + 4 * ks, 4), S(j) if ks else "0"))
        if mx and ks >= 2:
            a(mx.pop(0))
            if ks >= 6:
                a(mx.pop(0))
    assert not mx
for x in maxops(7):
    a(x)
stamp()
a("ds_write_b32 v%d, v%d" % (MW, VMAX))
a("s_waitcnt lgkmcnt(0)")
a("s_barrier")
a("ds_read2_b32 %s, v%d offset0:0 offset1:32" % (vr(T0, 2), MR))
a("ds_read2_b32 %s, v%d offset0:64 offset1:96" % (vr(T0 + 2, 2), MR))
a("s_waitcnt lgkmcnt(0)")
a("v_max3_f32 v%d, v%d, v%d, v%d" % (VMAX, T0, T0 + 1, T0 + 2))
a("v_max_f32 v%d, v%d, v%d" % (VMAX, VMAX, T0 + 3))
a("v_mul_f32 v%d, s%d, v%d" % (VMAX, sC, VMAX))

def pops(j):
    ops = []
    for i in range(16):
        ops.append("v_fma_f32 %s, %s, s%d, -v%d" % (S(j, i), S(j, i), sC, VMAX))
    seq = []
    fma = ["v_fma_f32 %s, %s, s%d, -v%d" % (S(j, i), S(j, i), sC, VMAX) for i in range(16)]
    ex = ["v_exp_f32 %s, %s" % (S(j, i), S(j, i)) for i in range(16)]
    ad = ["v_add_f32 v%d, v%d, %s" % (VL, VL, S(j, i)) for i in range(16)]
    cv = ["v_cvt_pk_bf16_f32 %s, %s, %s" % (S(j, i), S(j, 2 * i), S(j, 2 * i + 1)) for i in range(8)]
    seq += fma[:2]
    for i in range(16):
        seq.append(ex[i])
        if i + 2 < 16:
            seq.append(fma[i + 2])
        if i >= 1:
            seq.append(ad[i - 1])
        if i >= 2 and i % 2 == 0:
            seq.append(cv[i // 2 - 1])
    seq.append(ad[15])
    seq.append(cv[7])
    b = (j + 1) & 1
    seq.append("ds_write_b128 v%d, %s offset:%d" % (RINGW, vr(16 * j, 4), b * 16384))
    seq.append("ds_write_b128 v%d, %s offset:%d" % (RINGW, vr(16 * j + 4, 4), b * 16384 + 1024))
    return seq

for x in pops(0):
    a(x)

win = 2
for j in range(8):
    a("s_waitcnt vmcnt(%d) lgkmcnt(0)" % waitvm_n("V%d" % (2 * j + 1)))
    a("s_barrier")
    sl = vslot(2 * j)
    w2 = sl // 8
    if w2 != win:
        for x in range(4):
            a("v_add_u32 v%d, 0x%x, v%d" % (VA + x, ((w2 - win) * 65536) & 0xffffffff, VA + x))
        win = w2
    base = (sl % 8) * 8192
    order = []
    for who in range(2):
        if who == 1:
            b = (j + 1) & 1
            a("ds_read_b128 %s, v%d offset:%d" % (vr(PP, 4), RINGR, b * 16384))
            a("ds_read_b128 %s, v%d offset:%d" % (vr(PP + 4, 4), RINGR, b * 16384 + 1024))
        for t in range(2):
            for e in range(2):
                fb = FB + who * 16 + t * 8 + e * 4
                for sec in range(2):
                    a("ds_read_b64_tr_b16 %s, v%d offset:%d" % (vr(fb + 2 * sec, 2), VA + who * 2 + e, base + t * 4096 + sec * 2048))
    if j == 7:
        a("ds_read2_b32 %s, v%d offset0:0 offset1:32" % (vr(T0, 2), MR))
        a("ds_read2_b32 %s, v%d offset0:64 offset1:96" % (vr(T0 + 2, 2), MR))
    if j == 5:
        a("v_lshlrev_b32 v%d, 2, s%d" % (VDBG, sG))
        vmem("DBG", "buffer_load_dword v%d, v%d, %s, 0 offen sc1" % (VDBG, VDBG, SRD_D))
    po = pops(j + 1) if j < 7 else []
    if j == 6:
        po.append("v_add_u32 v%d, 0x8000, v%d" % (MW, MW))
        po.append("v_add_u32 v%d, 0x8000, v%d" % (MR, MR))
        po.append("ds_write_b32 v%d, v%d" % (MW, VL))
    extra = 2 if j == 7 else 0
    tot = 18 + extra
    npo = len(po)
    lead = 10
    for _ in range(min(lead, len(po))):
        a(po.pop(0))
    per = (len(po) + 7) // 8
    k = 0
    issued_ds_after = 0
    for who in range(2):
        for t in range(2):
            for e in range(2):
                done = (who * 10 + (t * 2 + e + 1) * 2)
                cnt = tot - done + issued_ds_after
                a("s_waitcnt lgkmcnt(%d)" % min(cnt, 15))
                fb = FB + who * 16 + t * 8 + e * 4
                pb = (16 * j + 4 * t) if who == 0 else (PP + 4 * t)
                acc = vr(OA + 16 * e, 16)
                first = (j == 0 and who == 0 and t == 0)
                a("v_mfma_f32_32x32x16_bf16 %s, %s, %s, %s" % (acc, vr(fb, 4), vr(pb, 4), "0" if first else acc))
                for _ in range(per):
                    if po:
                        x = po.pop(0)
                        a(x)
                        if x.startswith("ds_"):
                            issued_ds_after += 1
    assert not po
stamp()
a("s_waitcnt lgkmcnt(0)")
a("v_add_f32 v%d, v%d, v%d" % (VL, T0, T0 + 1))
a("v_add_f32 v%d, v%d, v%d" % (T0 + 2, T0 + 2, T0 + 3))
a("v_add_f32 v%d, v%d, v%d" % (VL, VL, T0 + 2))
a("v_lshlrev_b32 v%d, 4, v%d" % (T0 + 4, LANE))
a("v_lshlrev_b32 v%d, 3, v%d" % (T0 + 5, LANE))
a("s_cmp_eq_u32 s%d, s%d" % (sQT, sS))
a("s_cbranch_scc1 L_recv")
a("s_lshl_b32 s%d, s%d, 3" % (sT, sG))
a("s_add_u32 s%d, s%d, s%d" % (sT, sT, sW))
a("s_lshl_b32 s%d, s%d, 2" % (sT, sT))
a("s_add_u32 s%d, s%d, s%d" % (sT, sT, sS))
a("s_lshl_b32 s%d, s%d, 13" % (sT, sT))
a.fence()
for i in range(16):
    a("v_cvt_pk_bf16_f32 v%d, v%d, v%d" % (i, OA + 2 * i, OA + 2 * i + 1))
    if i % 4 == 3:
        a("buffer_store_dwordx4 %s, v%d, %s, s%d offen offset:%d sc1" % (vr(i - 3, 4), T0 + 4, SRD_W, sT, (i // 4) * 1024))
a("s_add_u32 s%d, s%d, 0x%x" % (sT2, sT, ML_OFF))
a("buffer_store_dwordx2 %s, v%d, %s, s%d offen sc1" % (vr(VMAX, 2), T0 + 5, SRD_W, sT2))
a("s_mov_b32 s%d, 0" % sT4)
a("L_dbgpoll:")
a("s_waitcnt vmcnt(0)")
a("v_readfirstlane_b32 s%d, v%d" % (sT2, VDBG))
a("s_lshl_b32 s%d, s%d, 3" % (sT3, sQT))
a("s_lshr_b32 s%d, s%d, s%d" % (sT2, sT2, sT3))
a("s_bitcmp1_b32 s%d, s%d" % (sT2, sQT))
a("s_cbranch_scc1 L_dbgok")
a("s_add_u32 s%d, s%d, 1" % (sT4, sT4))
a("s_cmp_gt_u32 s%d, 0x40000" % sT4)
a("s_cbranch_scc1 L_dbgok")
a("s_sleep 2")
a("v_lshlrev_b32 v%d, 2, s%d" % (VDBG, sG))
a("buffer_load_dword v%d, v%d, %s, 0 offen sc1" % (VDBG, VDBG, SRD_D))
a("s_branch L_dbgpoll")
a("L_dbgok:")
a("s_lshl_b32 s%d, s%d, 2" % (sT3, sH))
a("s_add_u32 s%d, s%d, s%d" % (sT3, sT3, sS))
a("s_lshr_b32 s%d, s%d, s%d" % (sT2, sT2, sT3))
a("s_and_b32 s%d, s%d, 1" % (sT2, sT2))
a("v_mov_b32 v%d, s%d" % (T0 + 6, sT2))
a("v_mov_b32 v%d, 0" % (T0 + 7))
a("s_add_u32 s%d, s%d, 0x%x" % (sT, sT, FLAG_OFF))
a("s_mov_b64 exec, 1")
a("buffer_store_dword v%d, v%d, %s, s%d offen sc1" % (T0 + 6, T0 + 7, SRD_W, sT))
a("s_mov_b64 exec, -1")
a("s_branch L_done")
a("L_recv:")
a("s_lshl_b32 s%d, s%d, 3" % (sT, sG))
a("s_add_u32 s%d, s%d, s%d" % (sT, sT, sW))
a("s_lshl_b32 s%d, s%d, 15" % (sT, sT))
a("s_add_u32 s%d, s%d, 0x%x" % (sT2, sT, FLAG_OFF))
a("v_and_b32 v%d, 3, v%d" % (T0 + 6, LANE))
a("v_lshlrev_b32 v%d, 13, v%d" % (T0 + 7, T0 + 6))
a("s_lshl_b32 s%d, s%d, 2" % (sT3, sH))
a("s_lshr_b32 s%d, s%d, s%d" % (sT3, sBYTE, sT3))
a("s_and_b32 s%d, s%d, 15" % (sT3, sT3))
a("s_lshl_b32 s%d, 1, s%d" % (sBYTE, sS))
a("s_mov_b32 s%d, 0" % sT4)
a("L_poll:")
a("buffer_load_dword v%d, v%d, %s, s%d offen sc1" % (T0 + 8, T0 + 7, SRD_W, sT2))
a("s_waitcnt vmcnt(0)")
a("v_and_b32 v%d, 1, v%d" % (T0 + 8, T0 + 8))
a("v_cmp_eq_u32 vcc, 1, v%d" % (T0 + 8))
a("s_or_b32 s%d, vcc_lo, s%d" % (sG, sBYTE))
a("s_and_b32 s%d, s%d, 15" % (sG, sG))
a("s_cmp_eq_u32 s%d, s%d" % (sG, sT3))
a("s_cbranch_scc1 L_pollok")
a("s_add_u32 s%d, s%d, 1" % (sT4, sT4))
a("s_cmp_gt_u32 s%d, 0x40000" % sT4)
a("s_cbranch_scc1 L_pollok")
a("s_sleep 1")
a("s_branch L_poll")
a("L_pollok:")
stamp()
for k in range(1, 4):
    a("s_xor_b32 s%d, s%d, %d" % (sT2, sS, k))
    a("s_lshl_b32 s%d, s%d, 13" % (sT2, sT2))
    a("s_add_u32 s%d, s%d, s%d" % (sT2, sT2, sT))
    a("s_add_u32 s%d, s%d, 0x%x" % (sT3, sT2, ML_OFF))
    a("buffer_load_dwordx2 %s, v%d, %s, s%d offen sc1" % (vr(48 + 2 * (k - 1), 2), T0 + 5, SRD_W, sT3))
    for x in range(4):
        a("buffer_load_dwordx4 %s, v%d, %s, s%d offen offset:%d sc1" % (vr(16 * (k - 1) + 4 * x, 4), T0 + 4, SRD_W, sT2, x * 1024))
a("v_and_b32 v60, 31, v%d" % LANE)
a("v_lshlrev_b32 v60, 8, v60")
a("v_lshrrev_b32 v61, 5, v%d" % LANE)
a("v_lshl_add_u32 v60, v61, 4, v60")
a("s_lshl_b32 s%d, s%d, 13" % (sT, sD))
a("s_lshl_b32 s%d, s%d, 7" % (sT2, sH))
a("s_add_u32 s%d, s%d, s%d" % (sT, sT, sT2))
a("s_waitcnt vmcnt(0)")
a("v_max3_f32 v54, v48, v50, v52")
a("v_max_f32 v54, v54, v%d" % VMAX)
a("v_sub_f32 v55, v%d, v54" % VMAX)
a("v_sub_f32 v56, v48, v54")
a("v_sub_f32 v57, v50, v54")
a("v_sub_f32 v58, v52, v54")
for r in (55, 56, 57, 58):
    a("v_exp_f32 v%d, v%d" % (r, r))
a("v_mul_f32 v59, v55, v%d" % VL)
a("v_fmac_f32 v59, v56, v49")
a("v_fmac_f32 v59, v57, v51")
a("v_fmac_f32 v59, v58, v53")
a("v_rcp_f32 v59, v59")
for r in (55, 56, 57, 58):
    a("v_mul_f32 v%d, v%d, v59" % (r, r))
for i in range(16):
    o0, o1 = OA + 2 * i, OA + 2 * i + 1
    a("v_mul_f32 v%d, v55, v%d" % (o0, o0))
    a("v_mul_f32 v%d, v55, v%d" % (o1, o1))
    for k in range(3):
        src = 16 * k + i
        a("v_lshlrev_b32 v62, 16, v%d" % src)
        a("v_and_b32 v63, 0xffff0000, v%d" % src)
        a("v_fmac_f32 v%d, v%d, v62" % (o0, 56 + k))
        a("v_fmac_f32 v%d, v%d, v63" % (o1, 56 + k))
    a("v_cvt_pk_bf16_f32 v%d, v%d, v%d" % (64 + i, o0, o1))
    if i % 4 == 3:
        b = 64 + i - 3
        a("v_permlane32_swap_b32 v%d, v%d" % (b, b + 2))
        a("v_permlane32_swap_b32 v%d, v%d" % (b + 1, b + 3))
        a("buffer_store_dwordx4 %s, v60, %s, s%d offen offset:%d" % (vr(b, 4), SRD_O, sT, (i // 4) * 32))
a("L_done:")
if STAMP:
    a("s_waitcnt vmcnt(0)")
    stamp()
    a("s_waitcnt lgkmcnt(0)")
    n = nstamp[0]
    for i in range(2 * n):
        a("v_mov_b32 v%d, s%d" % (i, sSTAMP + i))
    a("s_lshl_b32 s%d, s2, 3" % sT)
    a("s_add_u32 s%d, s%d, s%d" % (sT, sT, sW))
    a("s_lshl_b32 s%d, s%d, 7" % (sT, sT))
    a("s_add_u32 s%d, s%d, 0x%x" % (sT, sT, STAMP_BASE))
    a("v_mov_b32 v40, 0")
    a("s_mov_b64 exec, 1")
    for i in range(0, 2 * n, 2):
        a("buffer_store_dwordx2 %s, v40, %s, s%d offen offset:%d" % (vr(i, 2), SRD_W, sT, i * 4))
a("L_end:")
a("s_endpgm")

body = a.finish()
hdr = open("cdna_kernels/%s.s.ref" % NAME).read().split("\n")
head = [l for l in hdr if l.startswith(";") and "@launch" not in l]
txt = "\n".join(head) + "\n"
txt += "; @launch grid=(256,1,1) block=(512,1,1) lds=163840\n"
txt += """.amdgcn_target "amdgcn-amd-amdhsa--gfx950"
.text
.globl {n}_kernel
.p2align 8
.type {n}_kernel,@function
{n}_kernel:
""".format(n=NAME)
txt += body
txt += """.section .rodata,"a"
.p2align 6
.amdhsa_kernel {n}_kernel
  .amdhsa_next_free_vgpr 256
  .amdhsa_next_free_sgpr 102
  .amdhsa_accum_offset 256
  .amdhsa_group_segment_fixed_size 0
  .amdhsa_kernarg_size 48
  .amdhsa_user_sgpr_count 2
  .amdhsa_user_sgpr_kernarg_segment_ptr 1
  .amdhsa_system_sgpr_workgroup_id_x 1
.end_amdhsa_kernel
""".format(n=NAME)
open(OUT, "w").write(txt)
print("wrote", OUT, "instrs", len(a.ins), "nops", a.nnops)
```

```python
import sys, struct, math
from asmlib import Asm

NAME = "standalone__gqa_softmax__near_ridge"
argv = sys.argv[1:]
def opt(name, default):
    for x in argv:
        if x.startswith("--%s=" % name):
            return int(x.split("=")[1])
    return default
STAMP = opt("stamp", 0)
NE = opt("ne", 7)
ADDP1 = opt("addp1", 0)
PRIO = opt("prio", 0)
OUT = [x for x in argv if not x.startswith("--")]
OUT = OUT[0] if OUT else "cdna_kernels/%s.s" % NAME

SCALE = (128 ** -0.5) * math.log2(math.e)
SCALE_BITS = struct.unpack("<I", struct.pack("<f", SCALE))[0]

MSG = 8192
ML_OFF = 4096
FLAG_OFF = 6144
STAMP_BASE = 64 << 20

a = Asm()

def S(j, i=None):
    return "v%d" % (16 * j + i) if i is not None else "v[%d:%d]" % (16 * j, 16 * j + 15)
def vr(b, n):
    return "v[%d:%d]" % (b, b + n - 1)
QF = 128
OA = 128
FB = 160
PP = 208
RC = 224
TS = 232
KA = 240
VA = 248
VMAX, VL = 252, 253
RINGW, RINGR = 254, 255
VOFFK, VOFFV, LANE = 112, 113, 115
VFLAG, VFT = 208, 209
QA = 96
VDBG = 240
TM = 241

sW, sP, sS, sQG, sQT, sH = 40, 41, 42, 43, 44, 45
sKB, sQB, sM0B, sT, sC, sG, sD, sBYTE = 46, 47, 48, 49, 50, 51, 52, 53
sT2, sT3, sT4, sOOB = 54, 55, 56, 57
sSTAMP = 60

SRD_K, SRD_V, SRD_Q, SRD_O, SRD_W, SRD_D = "s[16:19]", "s[20:23]", "s[24:27]", "s[28:31]", "s[32:35]", "s[36:39]"

vm = []
lg = []
def vmem(tag, text):
    a(text)
    vm.append(tag)
def ds(tag, text):
    a(text)
    lg.append(tag)
def cnt(lst, tag):
    idx = max(i for i, t in enumerate(lst) if t == tag)
    return len(lst) - 1 - idx
def wait(v=None, l=None):
    s = "s_waitcnt"
    if v is not None:
        s += " vmcnt(%d)" % (0 if v == 0 else cnt(vm, v))
    if l is not None:
        s += " lgkmcnt(%d)" % (0 if l == 0 else min(15, cnt(lg, l)))
    a(s)
def emit(x):
    if callable(x):
        x()
    elif isinstance(x, tuple):
        (ds if x[0] == "ds" else vmem)(x[1], x[2])
    else:
        a(x)
def weight(x):
    if callable(x):
        return 3
    t = x[2] if isinstance(x, tuple) else x
    return 2 if t.startswith("v_exp") else 1
def weave(mf, fill, lead=0):
    fill = list(fill)
    w = 0
    while fill and w < lead:
        w += weight(fill[0])
        emit(fill.pop(0))
    tot = sum(weight(x) for x in fill)
    done = 0
    for k, (tag, text) in enumerate(mf):
        if tag is not None:
            wait(l=tag)
        a(text)
        target = tot * (k + 1) / len(mf)
        while fill and done + weight(fill[0]) / 2 <= target:
            done += weight(fill[0])
            emit(fill.pop(0))
    for x in fill:
        emit(x)

nstamp = [0]
def stamp(level=1):
    if STAMP and (level == 0 or level == STAMP):
        a("s_memrealtime s[%d:%d]" % (sSTAMP + 2 * nstamp[0], sSTAMP + 2 * nstamp[0] + 1))
        nstamp[0] += 1

def dma(tag, srd, voff, sbase, off, slot):
    a("s_add_u32 m0, s%d, 0x%x" % (sM0B, slot * 8192))
    a("s_add_u32 s%d, s%d, 0x%x" % (sT, sbase, off))
    vmem(tag, "buffer_load_dwordx4 v%d, %s, s%d offen lds" % (voff, srd, sT))

def vslot(t):
    return 16 + t if t < 4 else t - 4

a("s_cmp_ge_u32 s2, 0x100")
a("s_cbranch_scc1 L_end")
a("s_load_dwordx8 s[4:11], s[0:1], 0")
a("s_load_dwordx4 s[12:15], s[0:1], 32")
stamp(0)
a("v_lshrrev_b32 v1, 6, v0")
a("v_and_b32 v%d, 63, v0" % LANE)
a("v_readfirstlane_b32 s%d, v1" % sW)
a("s_and_b32 s%d, s2, 7" % sT)
a("s_lshr_b32 s%d, s2, 3" % sT2)
a("s_lshl_b32 s%d, s%d, 2" % (sP, sT))
a("s_lshr_b32 s%d, s%d, 3" % (sT3, sT2))
a("s_add_u32 s%d, s%d, s%d" % (sP, sP, sT3))
a("s_and_b32 s%d, s%d, 3" % (sS, sT2))
a("s_bfe_u32 s%d, s%d, 0x10002" % (sQG, sT2))
a("s_lshl_b32 s%d, s%d, 19" % (sKB, sP))
a("s_lshl_b32 s%d, s%d, 17" % (sT, sS))
a("s_add_u32 s%d, s%d, s%d" % (sKB, sKB, sT))
a("s_lshl_b32 s%d, s%d, 1" % (sG, sP))
a("s_add_u32 s%d, s%d, s%d" % (sG, sG, sQG))
a("s_lshl_b32 s%d, s%d, 15" % (sQB, sG))
a("s_lshl_b32 s%d, s%d, 10" % (sM0B, sW))
a("v_lshrrev_b32 v1, 4, v%d" % LANE)
a("s_lshl_b32 s%d, s%d, 2" % (sT, sW))
a("v_add_u32 v1, s%d, v1" % sT)
a("v_and_b32 v2, 15, v%d" % LANE)
a("v_and_b32 v3, 15, v1")
a("v_xor_b32 v3, v2, v3")
a("v_lshlrev_b32 v3, 4, v3")
a("v_lshl_add_u32 v%d, v1, 8, v3" % VOFFK)
for srd, size in ((16, 16 << 20), (24, 2 << 20)):
    a("s_mov_b32 s%d, 0x%x" % (srd + 2, size))
    a("s_mov_b32 s%d, 0x20000" % (srd + 3))
a("s_waitcnt lgkmcnt(0)")
for srd, ptr in ((16, 6), (24, 4)):
    a("s_mov_b32 s%d, s%d" % (srd, ptr))
    a("s_and_b32 s%d, s%d, 0xffff" % (srd + 1, ptr + 1))
dma("K0", SRD_K, VOFFK, sKB, 0, 0)
dma("K1", SRD_K, VOFFK, sKB, 8192, 1)
for x in range(4):
    dma("Q%d" % x, SRD_Q, VOFFK, sQB, x * 8192, 16 + x)
for t in range(2, 16):
    dma("K%d" % t, SRD_K, VOFFK, sKB, t * 8192, t)
stamp()
for srd, ptr, size in ((20, 8, 16 << 20), (28, 10, 2 << 20), (32, 14, 256 << 20), (36, 12, 256)):
    a("s_mov_b32 s%d, s%d" % (srd, ptr))
    a("s_and_b32 s%d, s%d, 0xffff" % (srd + 1, ptr + 1))
    a("s_mov_b32 s%d, 0x%x" % (srd + 2, size))
    a("s_mov_b32 s%d, 0x20000" % (srd + 3))
a("s_lshr_b32 s%d, s%d, 1" % (sQT, sW))
a("s_and_b32 s%d, s%d, 1" % (sH, sW))
a("s_lshl_b32 s%d, s%d, 2" % (sD, sG))
a("s_add_u32 s%d, s%d, s%d" % (sD, sD, sS))
a("s_mov_b32 s%d, 0x%08x" % (sC, SCALE_BITS))
a("v_and_b32 v4, 7, v%d" % LANE)
a("v_lshlrev_b32 v4, 13, v4")
a("s_lshl_b32 s%d, s%d, 16" % (sT2, sD))
a("s_add_u32 s%d, s%d, 0x%x" % (sT2, sT2, FLAG_OFF))
a("s_cmp_eq_u32 s%d, 0" % sW)
a("s_cselect_b32 s%d, 0, 0x40000000" % sOOB)
a("s_add_u32 s%d, s%d, s%d" % (sT2, sT2, sOOB))
a("s_mov_b64 exec, 0xff")
vmem("F", "buffer_load_dword v%d, v4, %s, s%d offen sc1" % (VFLAG, SRD_W, sT2))
a("s_mov_b64 exec, -1")
a("v_and_b32 v3, 3, v1")
a("v_lshlrev_b32 v3, 2, v3")
a("v_xor_b32 v3, v2, v3")
a("v_lshlrev_b32 v3, 4, v3")
a("v_lshl_add_u32 v%d, v1, 8, v3" % VOFFV)
a("v_and_b32 v1, 31, v%d" % LANE)
a("v_lshrrev_b32 v2, 5, v%d" % LANE)
a("v_and_b32 v3, 15, v1")
a("v_xor_b32 v3, v2, v3")
a("v_lshlrev_b32 v3, 4, v3")
a("v_lshl_add_u32 v3, v1, 8, v3")
a("s_lshl_b32 s%d, s%d, 13" % (sT, sH))
a("s_lshl_b32 s%d, s%d, 13" % (sT2, sQT))
a("s_add_u32 s%d, s%d, 0x20000" % (sT2, sT2))
for ks in range(8):
    a("v_xor_b32 v5, 0x%x, v3" % (ks << 5))
    a("v_add_u32 v%d, s%d, v5" % (KA + ks, sT))
    a("v_add_u32 v%d, s%d, v5" % (QA + ks, sT2))
a("v_and_b32 v1, 15, v%d" % LANE)
a("v_lshrrev_b32 v3, 2, v1")
a("v_lshl_add_u32 v4, v2, 2, v3")
a("v_lshlrev_b32 v4, 8, v4")
a("v_bfe_u32 v5, v%d, 4, 1" % LANE)
a("v_lshl_add_u32 v4, v5, 5, v4")
a("v_and_b32 v5, 3, v1")
a("v_lshl_add_u32 v4, v5, 3, v4")
a("s_lshl_b32 s%d, s%d, 1" % (sT2, sH))
a("s_lshl_b32 s%d, s%d, 13" % (sT, sH))
a("s_xor_b32 s%d, s%d, 0x2000" % (sT3, sT))
a("s_add_u32 s%d, s%d, 0x20000" % (sT, sT))
a("s_add_u32 s%d, s%d, 0x20000" % (sT3, sT3))
for e in range(2):
    a("v_xor_b32 v5, s%d, v3" % sT2)
    if e:
        a("v_xor_b32 v5, 1, v5")
    a("v_lshl_add_u32 v5, v5, 6, v4")
    a("v_add_u32 v%d, s%d, v5" % (VA + e, sT))
    a("v_add_u32 v%d, s%d, v5" % (VA + 2 + e, sT3))
a("v_lshlrev_b32 v1, 4, v%d" % LANE)
a("s_lshl_b32 s%d, s%d, 11" % (sT, sW))
a("s_add_u32 s%d, s%d, 0x%x" % (sT, sT, 98304))
a("s_xor_b32 s%d, s%d, 0x800" % (sT2, sT))
a("v_add_u32 v%d, s%d, v1" % (RINGW, sT))
a("v_add_u32 v%d, s%d, v1" % (RINGR, sT2))
a("v_mov_b32 v%d, 0xff800000" % VMAX)
a("v_mov_b32 v%d, 0" % VL)
if PRIO:
    a("s_cmp_ge_u32 s%d, 4" % sW)
    a("s_cbranch_scc0 L_noprio")
    a("s_setprio 1")
    a("L_noprio:")

def kf(j, ks):
    return FB + 4 * ks if ks < 4 else FB + 16 + 16 * (j & 1) + 4 * (ks - 4)
def qk(j, ks, tag=True):
    return ("k%d_%d" % (j, ks) if tag else None,
            "v_mfma_f32_32x32x16_bf16 %s, %s, %s, %s" % (S(j), vr(kf(j, ks), 4), vr(QF + 4 * ks, 4), S(j) if ks else "0"))
def maxops(j):
    return ["v_max3_f32 v%d, v%d, %s, %s" % (VMAX, VMAX, S(j, 2 * i), S(j, 2 * i + 1)) for i in range(8)]
def eops(j):
    seq = maxops(j)
    if j >= NE:
        return seq
    seq.append("v_mul_f32 v%d, s%d, v%d" % (RC + j, sC, VMAX))
    fma = ["v_fma_f32 %s, %s, s%d, -v%d" % (S(j, i), S(j, i), sC, RC + j) for i in range(16)]
    ex = ["v_exp_f32 %s, %s" % (S(j, i), S(j, i)) for i in range(16)]
    seq += fma[:2]
    for i in range(16):
        seq.append(ex[i])
        if i + 2 < 16:
            seq.append(fma[i + 2])
        if ADDP1 and i >= 2:
            seq.append("v_add_f32 v%d, %s, %s" % (TS + j, S(j, 0) if i == 2 else "v%d" % (TS + j), S(j, i - 1)))
    if ADDP1:
        seq.append("v_add_f32 v%d, v%d, %s" % (TS + j, TS + j, S(j, 15)))
    return seq

def half(seq, which):
    tot = sum(weight(x) for x in seq)
    w = 0
    k = 0
    while k < len(seq) and w < tot * 0.4:
        w += weight(seq[k])
        k += 1
    return seq[:k] if which == 0 else seq[k:]

def publish():
    a("v_and_b32 v%d, 1, v%d" % (VFLAG, VFLAG))
    a("v_cmp_eq_u32 vcc, 0, v%d" % VFLAG)
    a("s_lshl_b32 s%d, 0x11, s%d" % (sT2, sS))
    a("s_and_b32 s%d, vcc_lo, 0xff" % sBYTE)
    a("s_or_b32 s%d, s%d, s%d" % (sBYTE, sBYTE, sT2))
    a("v_mov_b32 v%d, s%d" % (VFLAG, sBYTE))
    a("v_mov_b32 v%d, s%d" % (VFT, sD))
    a("s_mov_b64 exec, 1")
    vmem("PUB", "buffer_store_byte v%d, v%d, %s, s%d offen sc1" % (VFLAG, VFT, SRD_D, sOOB))
    a("s_mov_b64 exec, -1")

pend = []
for j in range(8):
    wait(v=("K%d" % (2 * j + 1) if j else "Q3"), l=0)
    a("s_barrier")
    stamp(2)
    if j == 0:
        stamp()
    if j == 4:
        for ks in range(8):
            a("v_add_u32 v%d, 0x10000, v%d" % (KA + ks, KA + ks))
    for ks in range(8):
        if j == 0:
            ds("q%d" % ks, "ds_read_b128 %s, v%d" % (vr(QF + 4 * ks, 4), QA + ks))
        ds("k%d_%d" % (j, ks), "ds_read_b128 %s, v%d offset:%d" % (vr(kf(j, ks), 4), KA + ks, (j & 3) * 16384))
    fill = []
    vt = list(range(0, 6)) if j == 1 else ([2 * j + 2, 2 * j + 3] if 2 <= j <= 6 else [])
    for t in vt:
        fill.append(lambda t=t: dma("V%d" % t, SRD_V, VOFFV, sKB, t * 8192, vslot(t)))
    mf = []
    if j:
        mf += [qk(j - 1, ks, False) for ks in range(4, 8)]
    mf += [qk(j, ks) for ks in range(4)]
    if j >= 2:
        fill += half(eops(j - 2), 1)
    if j >= 1:
        weave(mf[:5], fill)
        weave(mf[5:], half(eops(j - 1), 0))
    else:
        weave(mf, fill)
mf = [qk(7, ks) for ks in range(4, 8)]
weave(mf, half(eops(6), 1))
wait(v="F")
publish()
for x in eops(7):
    a(x)
stamp()
a("v_mov_b32 v%d, v%d" % (TM, VMAX))
a("v_permlane32_swap_b32 v%d, v%d" % (TM, VMAX))
a("v_max_f32 v%d, v%d, v%d" % (VMAX, VMAX, TM))
ds("mw", "ds_write_b32 v%d, v%d" % (RINGR, VMAX))

RB = [16384, 0, 32768]
def pops(j):
    seq = []
    if j < NE:
        mu = ["v_mul_f32 %s, v%d, %s" % (S(j, i), RC + j, S(j, i)) for i in range(16)]
        for i in range(8):
            seq += mu[2 * i:2 * i + 2]
            if i >= 1:
                if not ADDP1:
                    seq.append("v_add_f32 v%d, v%d, %s" % (VL, VL, S(j, 2 * i - 2)))
                    seq.append("v_add_f32 v%d, v%d, %s" % (VL, VL, S(j, 2 * i - 1)))
                seq.append("v_cvt_pk_bf16_f32 %s, %s, %s" % (S(j, i - 1), S(j, 2 * i - 2), S(j, 2 * i - 1)))
        if not ADDP1:
            seq.append("v_add_f32 v%d, v%d, %s" % (VL, VL, S(j, 14)))
            seq.append("v_add_f32 v%d, v%d, %s" % (VL, VL, S(j, 15)))
        else:
            seq.append("v_fmac_f32 v%d, v%d, v%d" % (VL, RC + j, TS + j))
        seq.append("v_cvt_pk_bf16_f32 %s, %s, %s" % (S(j, 7), S(j, 14), S(j, 15)))
    else:
        fma = ["v_fma_f32 %s, %s, s%d, -v%d" % (S(j, i), S(j, i), sC, VMAX) for i in range(16)]
        ex = ["v_exp_f32 %s, %s" % (S(j, i), S(j, i)) for i in range(16)]
        ad = ["v_add_f32 v%d, v%d, %s" % (VL, VL, S(j, i)) for i in range(16)]
        cv = ["v_cvt_pk_bf16_f32 %s, %s, %s" % (S(j, i), S(j, 2 * i), S(j, 2 * i + 1)) for i in range(8)]
        seq += fma[:2]
        for i in range(16):
            seq.append(ex[i])
            if i + 2 < 16:
                seq.append(fma[i + 2])
            if i >= 1:
                seq.append(ad[i - 1])
            if i >= 2 and i % 2 == 0:
                seq.append(cv[i // 2 - 1])
        seq.append(ad[15])
        seq.append(cv[7])
    seq.append(("ds", "pw%d" % j, "ds_write_b128 v%d, %s offset:%d" % (RINGW, vr(16 * j, 4), RB[j % 3])))
    seq.append(("ds", "pw%d" % j, "ds_write_b128 v%d, %s offset:%d" % (RINGW, vr(16 * j + 4, 4), RB[j % 3] + 1024)))
    return seq

def vf(j, who, t, e):
    return (FB if who == 0 else FB + 16 + 16 * (j & 1)) + t * 8 + e * 4
def pv(j, who, t, e, tag=True, first=False):
    pb = (16 * j + 4 * t) if who == 0 else (PP + 8 * (j & 1) + 4 * t)
    acc = vr(OA + 16 * e, 16)
    return ("v%d_%d_%d_%d" % (j, who, t, e) if tag else None,
            "v_mfma_f32_32x32x16_bf16 %s, %s, %s, %s" % (acc, vr(vf(j, who, t, e), 4), vr(pb, 4), "0" if first else acc))
def pread(j):
    ds("pr%d" % j, "ds_read_b128 %s, v%d offset:%d" % (vr(PP + 8 * (j & 1), 4), RINGR, RB[j % 3]))
    ds("pr%d" % j, "ds_read_b128 %s, v%d offset:%d" % (vr(PP + 8 * (j & 1) + 4, 4), RINGR, RB[j % 3] + 1024))

win = 2
for j in range(8):
    if j == 7:
        wait(v="DBG")
        a("s_cmp_lg_u32 s%d, 0" % sW)
        a("s_cbranch_scc1 L_dbgdone")
        a("s_mov_b32 s%d, 0" % sT4)
        a("L_dbgpoll:")
        a("v_readfirstlane_b32 s%d, v%d" % (sBYTE, VDBG))
        a("s_and_b32 s%d, s%d, 0x08040201" % (sT2, sBYTE))
        a("s_cmp_eq_u32 s%d, 0x08040201" % sT2)
        a("s_cbranch_scc1 L_dbgok")
        a("s_add_u32 s%d, s%d, 1" % (sT4, sT4))
        a("s_cmp_gt_u32 s%d, 0x40000" % sT4)
        a("s_cbranch_scc1 L_dbgok")
        a("s_sleep 2")
        a("v_lshlrev_b32 v%d, 2, s%d" % (VDBG, sG))
        a("s_mov_b64 exec, 1")
        a("buffer_load_dword v%d, v%d, %s, 0 offen sc1" % (VDBG, VDBG, SRD_D))
        a("s_mov_b64 exec, -1")
        a("s_waitcnt vmcnt(0)")
        a("s_branch L_dbgpoll")
        a("L_dbgok:")
        a("v_mov_b32 v%d, 0x27ff0" % (TM + 2))
        a("s_mov_b64 exec, 1")
        a("ds_write_b32 v%d, v%d" % (TM + 2, VDBG))
        a("s_mov_b64 exec, -1")
        a("L_dbgdone:")
        wait(l=0)
    else:
        wait(v="V%d" % (2 * j + 1), l=0)
    a("s_barrier")
    stamp(2 if j < 7 else 9)
    sl = vslot(2 * j)
    w2 = sl // 8
    if w2 != win:
        for x in range(4):
            a("v_add_u32 v%d, 0x%x, v%d" % (VA + x, ((w2 - win) * 65536) & 0xffffffff, VA + x))
        win = w2
    base = (sl % 8) * 8192
    if j == 0:
        ds("mr", "ds_read_b32 v%d, v%d" % (TM, RINGW))
    if j == 1:
        pread(0)
    def vreads(who):
        for t in range(2):
            for e in range(2):
                for sec in range(2):
                    ds("v%d_%d_%d_%d" % (j, who, t, e), "ds_read_b64_tr_b16 %s, v%d offset:%d" % (
                        vr(vf(j, who, t, e) + 2 * sec, 2), VA + who * 2 + e, base + t * 4096 + sec * 2048))
    vreads(0)
    if j >= 1:
        pread(j)
    vreads(1)
    if j == 7:
        ds("lr", "ds_read_b32 v%d, v%d offset:49152" % (TM, RINGR))
        a("v_mov_b32 v%d, 0x27ff0" % (TM + 2))
        ds("dr", "ds_read_b32 v%d, v%d" % (VDBG, TM + 2))
    if j == 0:
        wait(l="mr")
        a("v_max_f32 v%d, v%d, v%d" % (VMAX, VMAX, TM))
        a("v_mul_f32 v%d, s%d, v%d" % (VMAX, sC, VMAX))
        for t in range(min(NE, 8)):
            a("v_sub_f32 v%d, v%d, v%d" % (RC + t, RC + t, VMAX))
            if t:
                a("v_exp_f32 v%d, v%d" % (RC + t - 1, RC + t - 1))
        if NE:
            a("v_exp_f32 v%d, v%d" % (RC + min(NE, 8) - 1, RC + min(NE, 8) - 1))
        for x in pops(0):
            emit(x)
    fill = pops(j + 1) if j < 7 else []
    if j == 4:
        fill = ["v_lshlrev_b32 v%d, 2, s%d" % (VDBG, sG),
                "s_mov_b64 exec, 1",
                ("vm", "DBG", "buffer_load_dword v%d, v%d, %s, s%d offen sc1" % (VDBG, VDBG, SRD_D, sOOB)),
                "s_mov_b64 exec, -1"]
        for x in fill:
            emit(x)
        fill = pops(j + 1)
    if j == 6:
        fill += ["v_mov_b32 v%d, v%d" % (TM + 1, VL),
                 "v_permlane32_swap_b32 v%d, v%d" % (TM + 1, VL),
                 "v_add_f32 v%d, v%d, v%d" % (VL, VL, TM + 1),
                 ("ds", "lw", "ds_write_b32 v%d, v%d offset:49152" % (RINGW, VL))]
    mf = []
    if j == 1:
        mf += [pv(0, 1, t, e, False) for t in range(2) for e in range(2)]
        mf[0] = ("pr0", mf[0][1])
    elif j >= 2:
        mf += [pv(j - 1, 1, t, e, False) for t in range(2) for e in range(2)]
    mf += [pv(j, 0, t, e, True, first=(j == 0 and t == 0)) for t in range(2) for e in range(2)]
    weave(mf, fill)
mf = [pv(7, 1, t, e) for t in range(2) for e in range(2)]
weave(mf, [])
stamp()
wait(l=0)
a("v_add_f32 v%d, v%d, v%d" % (VL, VL, TM))
LN, L16, L8 = 100, 101, 102
a("v_mbcnt_lo_u32_b32 v%d, -1, 0" % LN)
a("v_mbcnt_hi_u32_b32 v%d, -1, v%d" % (LN, LN))
a("v_lshlrev_b32 v%d, 4, v%d" % (L16, LN))
a("v_lshlrev_b32 v%d, 3, v%d" % (L8, LN))
a("s_cmp_eq_u32 s%d, s%d" % (sQT, sS))
a("s_cbranch_scc1 L_own")
a("s_lshl_b32 s%d, s%d, 3" % (sT, sG))
a("s_add_u32 s%d, s%d, s%d" % (sT, sT, sW))
a("s_lshl_b32 s%d, s%d, 2" % (sT, sT))
a("s_add_u32 s%d, s%d, s%d" % (sT, sT, sS))
a("s_lshl_b32 s%d, s%d, 13" % (sT, sT))
a("s_add_u32 s%d, s%d, 0x%x" % (sT2, sT, ML_OFF))
a("buffer_store_dwordx2 %s, v%d, %s, s%d offen sc1" % (vr(VMAX, 2), L8, SRD_W, sT2))
a.fence()
for i in range(16):
    a("v_cvt_pk_bf16_f32 v%d, v%d, v%d" % (i, OA + 2 * i, OA + 2 * i + 1))
    if i % 4 == 3:
        a("buffer_store_dwordx4 %s, v%d, %s, s%d offen offset:%d sc1" % (vr(i - 3, 4), L16, SRD_W, sT, (i // 4) * 1024))
a("v_readfirstlane_b32 s%d, v%d" % (sBYTE, VDBG))
a("s_lshl_b32 s%d, s%d, 3" % (sT3, sQT))
a("s_lshr_b32 s%d, s%d, s%d" % (sT2, sBYTE, sT3))
a("s_lshl_b32 s%d, s%d, 2" % (sT3, sH))
a("s_add_u32 s%d, s%d, s%d" % (sT3, sT3, sS))
a("s_lshr_b32 s%d, s%d, s%d" % (sT2, sT2, sT3))
a("s_and_b32 s%d, s%d, 1" % (sT2, sT2))
a("v_mov_b32 v20, s%d" % sT2)
a("v_mov_b32 v21, 0")
a("s_add_u32 s%d, s%d, 0x%x" % (sT, sT, FLAG_OFF))
a("s_mov_b64 exec, 1")
a("s_waitcnt vmcnt(0)")
a("buffer_store_dword v20, v21, %s, s%d offen sc1" % (SRD_W, sT))
a("s_mov_b64 exec, -1")
a("s_branch L_recv")
a("L_own:")
a("s_lshl_b32 s%d, s%d, 13" % (sT, sH))
a("v_add_u32 v20, s%d, v%d" % (sT, L16))
a.fence()
for x in range(8):
    a("ds_write_b128 v20, %s offset:%d" % (vr(OA + 4 * x, 4), x * 1024))
a("ds_write_b64 v%d, %s offset:16384" % (L8, vr(VMAX, 2)))
a("L_recv:")
a("s_waitcnt lgkmcnt(0)")
a("s_barrier")
a("s_lshl_b32 s%d, s%d, 11" % (sT, sW))
a("v_add_u32 v20, s%d, v%d" % (sT, L16))
a("ds_read_b128 v[24:27], v20")
a("ds_read_b128 v[28:31], v20 offset:1024")
a("ds_read_b64 v[32:33], v%d offset:16384" % L8)
a("v_readfirstlane_b32 s%d, v%d" % (sBYTE, VDBG))
a("s_lshl_b32 s%d, s%d, 3" % (sT3, sS))
a("s_lshr_b32 s%d, s%d, s%d" % (sBYTE, sBYTE, sT3))
a("s_lshr_b32 s%d, s%d, 2" % (sH, sW))
a("s_and_b32 s%d, s%d, 3" % (sQT, sW))
a("s_lshl_b32 s%d, s%d, 1" % (sT, sD))
a("s_add_u32 s%d, s%d, s%d" % (sT, sT, sH))
a("s_lshl_b32 s%d, s%d, 15" % (sT, sT))
a("s_add_u32 s%d, s%d, 0x%x" % (sT2, sT, FLAG_OFF))
a("v_lshlrev_b32 v21, 13, v%d" % LN)
a("s_lshl_b32 s%d, s%d, 2" % (sT3, sH))
a("s_lshr_b32 s%d, s%d, s%d" % (sT3, sBYTE, sT3))
a("s_and_b32 s%d, s%d, 15" % (sT3, sT3))
a("s_lshl_b32 s%d, 1, s%d" % (sBYTE, sS))
a("s_mov_b32 s%d, 0" % sT4)
a("s_mov_b64 exec, 15")
a("L_poll:")
a("buffer_load_dword v22, v21, %s, s%d offen sc1" % (SRD_W, sT2))
a("s_waitcnt vmcnt(0)")
a("v_and_b32 v22, 1, v22")
a("v_cmp_eq_u32 vcc, 1, v22")
a("s_or_b32 s%d, vcc_lo, s%d" % (sG, sBYTE))
a("s_and_b32 s%d, s%d, 15" % (sG, sG))
a("s_cmp_eq_u32 s%d, s%d" % (sG, sT3))
a("s_cbranch_scc1 L_pollok")
a("s_add_u32 s%d, s%d, 1" % (sT4, sT4))
a("s_cmp_gt_u32 s%d, 0x40000" % sT4)
a("s_cbranch_scc1 L_pollok")
a("s_sleep 1")
a("s_branch L_poll")
a("L_pollok:")
a("s_mov_b64 exec, -1")
stamp()
a("s_lshl_b32 s%d, s%d, 10" % (sT4, sQT))
for k in range(1, 4):
    a("s_xor_b32 s%d, s%d, %d" % (sT2, sS, k))
    a("s_lshl_b32 s%d, s%d, 13" % (sT2, sT2))
    a("s_add_u32 s%d, s%d, s%d" % (sT2, sT2, sT))
    a("s_add_u32 s%d, s%d, 0x%x" % (sT3, sT2, ML_OFF))
    a("buffer_load_dwordx2 %s, v%d, %s, s%d offen sc1" % (vr(48 + 2 * (k - 1), 2), L8, SRD_W, sT3))
    a("s_add_u32 s%d, s%d, s%d" % (sT2, sT2, sT4))
    a("buffer_load_dwordx4 %s, v%d, %s, s%d offen sc1" % (vr(4 * (k - 1), 4), L16, SRD_W, sT2))
a("v_and_b32 v60, 31, v%d" % LN)
a("v_lshlrev_b32 v60, 8, v60")
a("v_lshrrev_b32 v61, 5, v%d" % LN)
a("v_lshl_add_u32 v60, v61, 4, v60")
a("s_lshl_b32 s%d, s%d, 13" % (sT, sD))
a("s_lshl_b32 s%d, s%d, 5" % (sT2, sW))
a("s_add_u32 s%d, s%d, s%d" % (sT, sT, sT2))
a("s_waitcnt vmcnt(0) lgkmcnt(0)")
a("v_max3_f32 v54, v48, v50, v52")
a("v_max_f32 v54, v54, v32")
a("v_sub_f32 v55, v32, v54")
a("v_sub_f32 v56, v48, v54")
a("v_sub_f32 v57, v50, v54")
a("v_sub_f32 v58, v52, v54")
for r in (55, 56, 57, 58):
    a("v_exp_f32 v%d, v%d" % (r, r))
a("v_mul_f32 v59, v55, v33")
a("v_fmac_f32 v59, v56, v49")
a("v_fmac_f32 v59, v57, v51")
a("v_fmac_f32 v59, v58, v53")
a("v_rcp_f32 v59, v59")
for i in range(8):
    a("v_mul_f32 v%d, v55, v%d" % (24 + i, 24 + i))
for k in range(3):
    for i in range(4):
        src = 4 * k + i
        a("v_lshlrev_b32 v62, 16, v%d" % src)
        a("v_and_b32 v63, 0xffff0000, v%d" % src)
        a("v_fmac_f32 v%d, v%d, v62" % (24 + 2 * i, 56 + k))
        a("v_fmac_f32 v%d, v%d, v63" % (24 + 2 * i + 1, 56 + k))
for i in range(8):
    a("v_mul_f32 v%d, v59, v%d" % (24 + i, 24 + i))
for i in range(4):
    a("v_cvt_pk_bf16_f32 v%d, v%d, v%d" % (64 + i, 24 + 2 * i, 24 + 2 * i + 1))
a("v_permlane32_swap_b32 v64, v66")
a("v_permlane32_swap_b32 v65, v67")
a("buffer_store_dwordx4 v[64:67], v60, %s, s%d offen" % (SRD_O, sT))
if STAMP:
    a("s_waitcnt vmcnt(0)")
    stamp(0)
    a("s_waitcnt lgkmcnt(0)")
    n = nstamp[0]
    for i in range(2 * n):
        a("v_mov_b32 v%d, s%d" % (i, sSTAMP + i))
    a("s_lshl_b32 s%d, s2, 3" % sT)
    a("s_add_u32 s%d, s%d, s%d" % (sT, sT, sW))
    a("s_lshl_b32 s%d, s%d, 7" % (sT, sT))
    a("s_add_u32 s%d, s%d, 0x%x" % (sT, sT, STAMP_BASE))
    a("v_mov_b32 v40, 0")
    a("s_mov_b64 exec, 1")
    for i in range(0, 2 * n, 2):
        a("buffer_store_dwordx2 %s, v40, %s, s%d offen offset:%d" % (vr(i, 2), SRD_W, sT, i * 4))
a("L_end:")
a("s_endpgm")

body = a.finish()
hdr = open("cdna_kernels/%s.s.ref" % NAME).read().split("\n")
head = [l for l in hdr if l.startswith(";") and "@launch" not in l]
txt = "\n".join(head) + "\n"
txt += "; @launch grid=(256,1,1) block=(512,1,1) lds=163840\n"
txt += """.amdgcn_target "amdgcn-amd-amdhsa--gfx950"
.text
.globl {n}_kernel
.p2align 8
.type {n}_kernel,@function
{n}_kernel:
""".format(n=NAME)
txt += body
txt += """.section .rodata,"a"
.p2align 6
.amdhsa_kernel {n}_kernel
  .amdhsa_next_free_vgpr 256
  .amdhsa_next_free_sgpr 102
  .amdhsa_accum_offset 256
  .amdhsa_group_segment_fixed_size 0
  .amdhsa_kernarg_size 48
  .amdhsa_user_sgpr_count 2
  .amdhsa_user_sgpr_kernarg_segment_ptr 1
  .amdhsa_system_sgpr_workgroup_id_x 1
.end_amdhsa_kernel
""".format(n=NAME)
open(OUT, "w").write(txt)
print("wrote", OUT, "instrs", len(a.ins), "nops", a.nnops, "stamps", nstamp[0])
```

```python
import sys, struct, math
from asmlib import Asm

NAME = "standalone__gqa_softmax__near_ridge"
argv = sys.argv[1:]
def opt(name, default):
    for x in argv:
        if x.startswith("--%s=" % name):
            return int(x.split("=")[1])
    return default
STAMP = opt("stamp", 0)
D = opt("d", 3)
DMAX = opt("dmax", 0)
PRIO = opt("prio", 0)
TLOG = opt("t", 6)
OUT = [x for x in argv if not x.startswith("--")]
OUT = OUT[0] if OUT else "cdna_kernels/%s.s" % NAME

def fbits(x):
    return struct.unpack("<I", struct.pack("<f", x))[0]
SCALE = (128 ** -0.5) * math.log2(math.e)
CB = fbits(SCALE)
NCB = fbits(-SCALE)
TRAW = fbits(TLOG / SCALE)

MSG = 8192
ML_OFF = 4096
FLAG_OFF = 6144
STAMP_BASE = 64 << 20
QBASE = 131072

a = Asm()
def vr(b, n):
    return "v[%d:%d]" % (b, b + n - 1)
OA = 0
QF = 64
KF = 96
VF = 128
SB = 160
PB = 176
KA = 184
VA = 192
VOFFK0, VOFFK1, VOFFV = 196, 197, 198
LANE = 199
NEGMC, VL = 200, 201
THR, TMAX = 202, 203
T0 = 204
VFLAG, VFT, VDBG = 220, 221, 222
L16, L8 = 223, 224
XW, XR = 225, 226
NVGPR = 232

sW, sP, sS, sQG, sU, sGRP = 40, 41, 42, 43, 44, 45
sKB, sQB, sM0B, sT, sG, sD, sBYTE = 46, 47, 48, 49, 51, 52, 53
sT2, sT3, sT4, sOOB = 54, 55, 56, 57
sRET = 58
sSTAMP = 60
SRD_K, SRD_V, SRD_Q, SRD_O, SRD_W, SRD_D = "s[16:19]", "s[20:23]", "s[24:27]", "s[28:31]", "s[32:35]", "s[36:39]"

vm, lg = [], []
def vmem(tag, text):
    a(text); vm.append(tag)
def ds(tag, text):
    a(text); lg.append(tag)
def cnt(lst, tag):
    idx = max(i for i, t in enumerate(lst) if t == tag)
    return len(lst) - 1 - idx
def wait(v=None, l=None):
    s = "s_waitcnt"
    if v is not None:
        s += " vmcnt(%d)" % (0 if v == 0 else cnt(vm, v))
    if l is not None:
        s += " lgkmcnt(%d)" % (0 if l == 0 else min(15, cnt(lg, l)))
    a(s)
def emit(x):
    if callable(x):
        x()
    elif isinstance(x, tuple):
        (ds if x[0] == "ds" else vmem)(x[1], x[2])
    else:
        a(x)
def weight(x):
    if callable(x):
        return 3
    t = x[2] if isinstance(x, tuple) else x
    return 2 if t.startswith("v_exp") else 1
def weave(mf, fill):
    fill = list(fill)
    tot = sum(weight(x) for x in fill)
    done = 0
    for k, text in enumerate(mf):
        emit(text)
        target = tot * (k + 1) / len(mf)
        while fill and done + weight(fill[0]) / 2 <= target:
            done += weight(fill[0])
            emit(fill.pop(0))
    for x in fill:
        emit(x)

nstamp = [0]
def stamp(level=1):
    if STAMP and (level == 0 or level == STAMP) and nstamp[0] < 15 + (level == 0):
        a(("s_memtime" if level >= 3 else "s_memrealtime") + " s[%d:%d]" % (sSTAMP + 2 * nstamp[0], sSTAMP + 2 * nstamp[0] + 1))
        nstamp[0] += 1

def dma_unit(n):
    out = []
    slot = (n & 3) * 16384
    if n <= 7:
        def k(n=n, slot=slot):
            a("s_add_u32 m0, s%d, 0x%x" % (sM0B, slot))
            a("s_add_u32 s%d, s%d, 0x%x" % (sT, sKB, n * 16384))
            vmem("U%d" % n, "buffer_load_dwordx4 v%d, %s, s%d offen lds" % (VOFFK0, SRD_K, sT))
            vmem("U%d" % n, "buffer_load_dwordx4 v%d, %s, s%d offen offset:1024 lds" % (VOFFK1, SRD_K, sT))
        out.append(k)
    if 1 <= n <= 8:
        def v(n=n, slot=slot):
            a("s_add_u32 m0, s%d, 0x%x" % (sM0B, slot + 8192))
            a("s_add_u32 s%d, s%d, 0x%x" % (sT, sKB, (n - 1) * 16384))
            vmem("U%d" % n, "buffer_load_dwordx4 v%d, %s, s%d offen lds" % (VOFFV, SRD_V, sT))
            vmem("U%d" % n, "buffer_load_dwordx4 v%d, %s, s%d offen offset:1024 lds" % (VOFFV, SRD_V, sT))
        out.append(v)
    return out

a("s_cmp_ge_u32 s2, 0x100")
a("s_cbranch_scc1 L_end")
a("s_load_dwordx8 s[4:11], s[0:1], 0")
a("s_load_dwordx4 s[12:15], s[0:1], 32")
stamp(0)
a("v_lshrrev_b32 v1, 6, v0")
a("v_and_b32 v%d, 63, v0" % LANE)
a("v_readfirstlane_b32 s%d, v1" % sW)
a("s_and_b32 s%d, s2, 7" % sT)
a("s_lshr_b32 s%d, s2, 3" % sT2)
a("s_lshl_b32 s%d, s%d, 2" % (sP, sT))
a("s_lshr_b32 s%d, s%d, 3" % (sT3, sT2))
a("s_add_u32 s%d, s%d, s%d" % (sP, sP, sT3))
a("s_and_b32 s%d, s%d, 3" % (sS, sT2))
a("s_bfe_u32 s%d, s%d, 0x10002" % (sQG, sT2))
a("s_and_b32 s%d, s%d, 3" % (sU, sW))
a("s_lshr_b32 s%d, s%d, 2" % (sGRP, sW))
a("s_lshl_b32 s%d, s%d, 19" % (sKB, sP))
a("s_lshl_b32 s%d, s%d, 17" % (sT, sS))
a("s_add_u32 s%d, s%d, s%d" % (sKB, sKB, sT))
a("s_lshl_b32 s%d, s%d, 13" % (sT, sGRP))
a("s_add_u32 s%d, s%d, s%d" % (sKB, sKB, sT))
a("s_lshl_b32 s%d, s%d, 1" % (sG, sP))
a("s_add_u32 s%d, s%d, s%d" % (sG, sG, sQG))
a("s_lshl_b32 s%d, s%d, 15" % (sQB, sG))
a("s_lshl_b32 s%d, s%d, 14" % (sT, sGRP))
a("s_add_u32 s%d, s%d, s%d" % (sQB, sQB, sT))
a("s_lshl_b32 s%d, s%d, 11" % (sT3, sU))
a("s_add_u32 s%d, s%d, s%d" % (sT4, sT3, sT))
a("s_lshl_b32 s%d, s%d, 16" % (sM0B, sGRP))
a("s_add_u32 s%d, s%d, s%d" % (sM0B, sM0B, sT3))
a("v_lshrrev_b32 v1, 4, v%d" % LANE)
a("s_lshl_b32 s%d, s%d, 3" % (sT, sU))
a("v_add_u32 v1, s%d, v1" % sT)
a("v_and_b32 v2, 15, v%d" % LANE)
a("v_and_b32 v3, 15, v1")
a("v_xor_b32 v3, v2, v3")
a("v_lshlrev_b32 v3, 4, v3")
a("v_lshl_add_u32 v%d, v1, 8, v3" % VOFFK0)
a("v_xor_b32 v%d, 64, v%d" % (VOFFK1, VOFFK0))
a("v_and_b32 v3, 3, v1")
a("v_lshlrev_b32 v3, 2, v3")
a("v_xor_b32 v3, v2, v3")
a("v_lshlrev_b32 v3, 4, v3")
a("v_lshl_add_u32 v%d, v1, 8, v3" % VOFFV)
for srd, size in ((16, 16 << 20), (24, 2 << 20), (20, 16 << 20)):
    a("s_mov_b32 s%d, 0x%x" % (srd + 2, size))
    a("s_mov_b32 s%d, 0x20000" % (srd + 3))
a("s_waitcnt lgkmcnt(0)")
for srd, ptr in ((16, 6), (24, 4), (20, 8)):
    a("s_mov_b32 s%d, s%d" % (srd, ptr))
    a("s_and_b32 s%d, s%d, 0xffff" % (srd + 1, ptr + 1))
for x in range(2):
    a("s_add_u32 m0, s%d, 0x%x" % (sT4, QBASE + x * 8192))
    a("s_add_u32 s%d, s%d, 0x%x" % (sT, sQB, x * 8192))
    vmem("Q", "buffer_load_dwordx4 v%d, %s, s%d offen lds" % (VOFFK0, SRD_Q, sT))
    vmem("Q", "buffer_load_dwordx4 v%d, %s, s%d offen offset:1024 lds" % (VOFFK1, SRD_Q, sT))
for n in range(D):
    for f in dma_unit(n):
        f()
stamp()
for srd, ptr, size in ((28, 10, 2 << 20), (32, 14, 256 << 20), (36, 12, 256)):
    a("s_mov_b32 s%d, s%d" % (srd, ptr))
    a("s_and_b32 s%d, s%d, 0xffff" % (srd + 1, ptr + 1))
    a("s_mov_b32 s%d, 0x%x" % (srd + 2, size))
    a("s_mov_b32 s%d, 0x20000" % (srd + 3))
a("s_lshl_b32 s%d, s%d, 2" % (sD, sG))
a("s_add_u32 s%d, s%d, s%d" % (sD, sD, sS))
a("v_and_b32 v4, 7, v%d" % LANE)
a("v_lshlrev_b32 v4, 13, v4")
a("s_lshl_b32 s%d, s%d, 16" % (sT2, sD))
a("s_add_u32 s%d, s%d, 0x%x" % (sT2, sT2, FLAG_OFF))
a("s_cmp_eq_u32 s%d, 0" % sW)
a("s_cselect_b32 s%d, 0, 0x40000000" % sOOB)
a("s_add_u32 s%d, s%d, s%d" % (sT2, sT2, sOOB))
a("s_mov_b64 exec, 0xff")
vmem("F", "buffer_load_dword v%d, v4, %s, s%d offen sc1" % (VFLAG, SRD_W, sT2))
a("s_mov_b64 exec, -1")
a("v_and_b32 v1, 31, v%d" % LANE)
a("v_lshrrev_b32 v2, 5, v%d" % LANE)
a("v_and_b32 v3, 15, v1")
a("v_xor_b32 v3, v2, v3")
a("v_lshlrev_b32 v3, 4, v3")
a("v_lshl_add_u32 v3, v1, 8, v3")
a("s_lshl_b32 s%d, s%d, 16" % (sT, sGRP))
a("s_lshl_b32 s%d, s%d, 13" % (sT2, sU))
a("s_add_u32 s%d, s%d, 0x%x" % (sT2, sT2, QBASE))
for ks in range(8):
    a("v_xor_b32 v5, 0x%x, v3" % (ks << 5))
    a("v_add_u32 v%d, s%d, v5" % (KA + ks, sT))
    a("v_add_u32 v%d, s%d, v5" % (T0 + ks, sT2))
a("v_and_b32 v1, 15, v%d" % LANE)
a("v_lshrrev_b32 v3, 2, v1")
a("v_lshl_add_u32 v4, v2, 2, v3")
a("v_lshlrev_b32 v4, 8, v4")
a("v_bfe_u32 v5, v%d, 4, 1" % LANE)
a("v_lshl_add_u32 v4, v5, 5, v4")
a("v_and_b32 v5, 3, v1")
a("v_lshl_add_u32 v4, v5, 3, v4")
a("s_add_u32 s%d, s%d, 0x2000" % (sT, sT))
a("v_add_u32 v4, s%d, v4" % sT)
for dt in range(4):
    a("v_xor_b32 v5, %d, v3" % dt)
    a("v_lshl_add_u32 v%d, v5, 6, v4" % (VA + dt))
a("v_lshlrev_b32 v%d, 4, v%d" % (L16, LANE))
a("v_lshlrev_b32 v%d, 3, v%d" % (L8, LANE))
a("s_lshl_b32 s%d, s%d, 9" % (sT, sW))
a("s_add_u32 s%d, s%d, 0x%x" % (sT, sT, 49152))
a("s_xor_b32 s%d, s%d, 0x800" % (sT2, sT))
a("v_add_u32 v%d, s%d, v%d" % (XW, sT, L8))
a("v_add_u32 v%d, s%d, v%d" % (XR, sT2, L8))
a("v_mov_b32 v%d, 0" % VL)
if PRIO:
    a("s_cmp_eq_u32 s%d, %d" % (sGRP, PRIO - 1))
    a("s_cbranch_scc0 L_noprio")
    a("s_setprio 1")
    a("L_noprio:")
a("s_cmp_eq_u32 s%d, 0" % sGRP)
a("s_cbranch_scc1 L_g1start")
wait(v="Q")
a("s_barrier")
a("L_g1start:")
wait(v="U0")
a("s_barrier")
stamp()

def S(i):
    return "v%d" % (SB + i)
def kreads(n):
    return [("ds", "k", "ds_read_b128 %s, v%d offset:%d" % (vr(KF + 4 * ks, 4), KA + ks, (n & 3) * 16384)) for ks in range(8)]
def vfr(t, dt):
    return VF + t * 16 + dt * 4
def vreads(n):
    out = []
    for t in range(2):
        for dt in range(4):
            for sec in range(2):
                out.append(("ds", "v", "ds_read_b64_tr_b16 %s, v%d offset:%d" % (
                    vr(vfr(t, dt) + 2 * sec, 2), VA + dt, (n & 3) * 16384 + t * 4096 + sec * 2048)))
    return out
def qk():
    return ["v_mfma_f32_32x32x16_bf16 %s, %s, %s, %s" % (vr(SB, 16), vr(KF + 4 * ks, 4), vr(QF + 4 * ks, 4), vr(SB, 16) if ks else "0")
            for ks in range(8)]
def pv(first, order=None):
    out = []
    order = order or [(t, dt) for t in range(2) for dt in range(4)]
    for t, dt in order:
        acc = vr(OA + 16 * dt, 16)
        out.append("v_mfma_f32_32x32x16_bf16 %s, %s, %s, %s" % (acc, vr(vfr(t, dt), 4), vr(PB + 4 * t, 4), "0" if (first and t == 0) else acc))
    return out
def adds():
    return ["v_add_f32 v%d, v%d, %s" % (VL, VL, S(i)) for i in range(16)]
def maxes():
    seq = ["v_max3_f32 v%d, %s, %s, %s" % (TMAX, S(0), S(1), S(2))]
    for i in range(3, 15, 2):
        seq.append("v_max3_f32 v%d, v%d, %s, %s" % (TMAX, TMAX, S(i), S(i + 1)))
    seq.append("v_max_f32 v%d, v%d, %s" % (TMAX, TMAX, S(15)))
    return seq
def exps(withadds):
    fma = ["v_fmamk_f32 %s, %s, 0x%08x, v%d" % (S(i), S(i), CB, NEGMC) for i in range(16)]
    ex = ["v_exp_f32 %s, %s" % (S(i), S(i)) for i in range(16)]
    cv = ["v_cvt_pk_bf16_f32 v%d, %s, %s" % (PB + i, S(2 * i), S(2 * i + 1)) for i in range(8)]
    ad = adds()
    seq = fma[:2]
    for i in range(16):
        seq.append(ex[i])
        if i + 2 < 16:
            seq.append(fma[i + 2])
        if withadds and i >= 1:
            seq.append(ad[i - 1])
        if i >= 2 and i % 2 == 0:
            seq.append(cv[i // 2 - 1])
    if withadds:
        seq.append(ad[15])
    seq.append(cv[7])
    return seq
def merge(xs, ys):
    out = []
    n, m = len(xs), len(ys)
    k = 0
    for i, x in enumerate(xs):
        out.append(x)
        while k < m and (k + 1) * n <= (i + 1) * m:
            out.append(ys[k]); k += 1
    out += ys[k:]
    return out

def publish():
    wait(v="F")
    a("v_and_b32 v%d, 1, v%d" % (VFLAG, VFLAG))
    a("v_cmp_eq_u32 vcc, 0, v%d" % VFLAG)
    a("s_lshl_b32 s%d, 0x11, s%d" % (sT2, sS))
    a("s_and_b32 s%d, vcc_lo, 0xff" % sBYTE)
    a("s_or_b32 s%d, s%d, s%d" % (sBYTE, sBYTE, sT2))
    a("v_mov_b32 v%d, s%d" % (VFLAG, sBYTE))
    a("v_mov_b32 v%d, s%d" % (VFT, sD))
    a("s_mov_b64 exec, 1")
    vmem("PUB", "buffer_store_byte v%d, v%d, %s, s%d offen sc1" % (VFLAG, VFT, SRD_D, sOOB))
    a("s_mov_b64 exec, -1")
def dbgload():
    a("v_lshlrev_b32 v%d, 2, s%d" % (VDBG, sG))
    a("s_mov_b64 exec, 1")
    vmem("DBG", "buffer_load_dword v%d, v%d, %s, s%d offen sc1" % (VDBG, VDBG, SRD_D, sOOB))
    a("s_mov_b64 exec, -1")
DBG_LDS = 49152 + 4096
def dbgcheck():
    wait(v=0)
    a("s_cmp_lg_u32 s%d, 0" % sW)
    a("s_cbranch_scc1 L_dbgdone")
    a("s_mov_b32 s%d, 0" % sT4)
    a("L_dbgpoll:")
    a("v_readfirstlane_b32 s%d, v%d" % (sBYTE, VDBG))
    a("s_and_b32 s%d, s%d, 0x08040201" % (sT2, sBYTE))
    a("s_cmp_eq_u32 s%d, 0x08040201" % sT2)
    a("s_cbranch_scc1 L_dbgok")
    a("s_add_u32 s%d, s%d, 1" % (sT4, sT4))
    a("s_cmp_gt_u32 s%d, 0x40000" % sT4)
    a("s_cbranch_scc1 L_dbgok")
    a("s_sleep 2")
    a("v_lshlrev_b32 v%d, 2, s%d" % (VDBG, sG))
    a("s_mov_b64 exec, 1")
    a("buffer_load_dword v%d, v%d, %s, 0 offen sc1" % (VDBG, VDBG, SRD_D))
    a("s_mov_b64 exec, -1")
    a("s_waitcnt vmcnt(0)")
    a("s_branch L_dbgpoll")
    a("L_dbgok:")
    a("v_mov_b32 v%d, 0x%x" % (VFT, DBG_LDS))
    a("s_mov_b64 exec, 1")
    a("ds_write_b32 v%d, v%d" % (VFT, VDBG))
    a("s_mov_b64 exec, -1")
    a("L_dbgdone:")

def lsum_write():
    a("v_mov_b32 v%d, v%d" % (T0, VL))
    a("v_permlane32_swap_b32 v%d, v%d" % (T0, VL))
    a("v_add_f32 v%d, v%d, v%d" % (VL, VL, T0))
    ds("mlw", "ds_write_b64 v%d, %s" % (XW, vr(NEGMC, 2)))

for n in range(9):
    i = n - 1
    rd = []
    if n == 0:
        for ks in range(8):
            rd.append(("ds", "q", "ds_read_b128 %s, v%d" % (vr(QF + 4 * ks, 4), T0 + ks)))
    if n >= 1:
        rd += vreads(n)
    if n <= 7:
        rd += kreads(n)
    dm = dma_unit(n + D) if n + D <= 8 else []
    if n == 0:
        for x in rd:
            emit(x)
    else:
        head, rd = rd[:6], rd[6:]
        for x in head:
            emit(x)
        for x in merge(maxes(), rd[:4]):
            emit(x)
        rd = rd[4:]
        if n == 1:
            a("v_mov_b32 v%d, v%d" % (T0, TMAX))
            a("v_permlane32_swap_b32 v%d, v%d" % (T0, TMAX))
            a("v_max_f32 v%d, v%d, v%d" % (TMAX, TMAX, T0))
            a("v_mul_f32 v%d, 0x%08x, v%d" % (NEGMC, NCB, TMAX))
            a("v_add_f32 v%d, 0x%08x, v%d" % (THR, TRAW, TMAX))
        else:
            a("v_cmp_gt_f32 vcc, v%d, v%d" % (TMAX, THR))
            a("s_cbranch_vccz L_nors%d" % n)
            a("s_call_b64 s[%d:%d], L_rescale" % (sRET, sRET + 1))
            a("L_nors%d:" % n)
        for x in merge(exps(n == 8), rd):
            emit(x)
    if not DMAX:
        for f in dm:
            f()
    if n == 2:
        publish()
    if n == 6:
        dbgload()
    if n == 8:
        lsum_write()
    wait(l=0)
    stamp(3 if n in (3, 4) else 99)
    a("s_barrier")
    stamp(2 if n < 7 else 99)
    stamp(3 if n in (3, 4) else 99)
    if n == 8:
        break
    mf = []
    if n >= 1:
        weave(pv(n == 1), adds())
    weave(qk(), dm if DMAX else [])
    if n == 7:
        dbgcheck()
        wait(l=0)
    else:
        wait(v="U%d" % (n + 1))
    stamp(3 if n in (3, 4) else 99)
    a("s_barrier")
    stamp(2 if n < 7 else 99)
    stamp(3 if n in (3, 4) else 99)

HS = T0 + 8
A1, A2 = T0 + 2, T0 + 3
def coeffs():
    a("v_min_f32 v%d, v%d, v%d" % (T0 + 4, NEGMC, T0))
    a("v_sub_f32 v%d, v%d, v%d" % (A1, T0 + 4, NEGMC))
    a("v_sub_f32 v%d, v%d, v%d" % (A2, T0 + 4, T0))
    a("v_exp_f32 v%d, v%d" % (A1, A1))
    a("v_exp_f32 v%d, v%d" % (A2, A2))
    a("v_mov_b32 v%d, v%d" % (NEGMC, T0 + 4))
    a("v_mul_f32 v%d, v%d, v%d" % (VL, A1, VL))
    a("v_fmac_f32 v%d, v%d, v%d" % (VL, A2, T0 + 1))
a("s_lshl_b32 s%d, s%d, 13" % (sT, sU))
a("v_add_u32 v%d, s%d, v%d" % (HS, sT, L16))
a("v_add_u32 v%d, 0x%x, v%d" % (HS + 1, QBASE, HS))
a("s_cmp_eq_u32 s%d, 0" % sGRP)
a("s_cbranch_scc0 L_g2fin")
m = pv(False, [(0, 2), (0, 3), (1, 2), (1, 3), (0, 0), (0, 1), (1, 0), (1, 1)])
for x in m[:6]:
    a(x)
wr = ["ds_write_b128 v%d, %s offset:%d" % (HS + 1, vr(OA + 32 + 4 * x, 4), x * 1024) for x in range(8)]
weave(m[6:], wr)
a("s_waitcnt lgkmcnt(0)")
a("s_barrier")
a("ds_read_b64 %s, v%d" % (vr(T0, 2), XR))
a("v_mov_b32 v%d, 0x%x" % (VFT, DBG_LDS))
a("ds_read_b32 v%d, v%d" % (VDBG, VFT))
a("s_waitcnt lgkmcnt(0)")
coeffs()
for r in range(32):
    a("v_mul_f32 v%d, v%d, v%d" % (OA + r, A1, OA + r))
a("s_barrier")
for x in range(8):
    a("ds_read_b128 %s, v%d offset:%d" % (vr(KF + 4 * x, 4), HS, x * 1024))
for x in range(8):
    a("s_waitcnt lgkmcnt(%d)" % (7 - x))
    for r in range(4):
        a("v_fmac_f32 v%d, v%d, v%d" % (OA + 4 * x + r, A2, KF + 4 * x + r))
a("s_branch L_fin")
a("L_g2fin:")
a("ds_read_b64 %s, v%d" % (vr(T0, 2), XR))
a("v_mov_b32 v%d, 0x%x" % (VFT, DBG_LDS))
a("ds_read_b32 v%d, v%d" % (VDBG, VFT))
for x in range(8):
    a("ds_read_b128 %s, v%d offset:%d" % (vr(KF + 4 * x, 4), HS + 1, x * 1024))
m = pv(False, [(0, 0), (0, 1), (1, 0), (1, 1), (0, 2), (0, 3), (1, 2), (1, 3)])
for x in m[:3]:
    a(x)
a("s_waitcnt lgkmcnt(8)")
coeffs()
a(m[3])
a("s_waitcnt lgkmcnt(0)")
mu = ["v_mul_f32 v%d, v%d, v%d" % (KF + r, A2, KF + r) for r in range(32)]
weave(m[4:6], mu[:12])
wr = ["ds_write_b128 v%d, %s offset:%d" % (HS, vr(OA + 4 * x, 4), x * 1024) for x in range(8)]
weave(m[6:], wr)
for x in mu[12:]:
    a(x)
a("s_waitcnt lgkmcnt(0)")
a("s_barrier")
for r in range(32):
    a("v_fma_f32 v%d, v%d, v%d, v%d" % (OA + r, A1, OA + 32 + r, KF + r))
a("L_fin:")
stamp()
a("v_readfirstlane_b32 s%d, v%d" % (sBYTE, VDBG))
a("s_cmp_eq_u32 s%d, s%d" % (sU, sS))
a("s_cbranch_scc1 L_own")
a("s_lshl_b32 s%d, s%d, 2" % (sT, sG))
a("s_add_u32 s%d, s%d, s%d" % (sT, sT, sU))
a("s_lshl_b32 s%d, s%d, 1" % (sT, sT))
a("s_add_u32 s%d, s%d, s%d" % (sT, sT, sGRP))
a("s_lshl_b32 s%d, s%d, 2" % (sT, sT))
a("s_add_u32 s%d, s%d, s%d" % (sT, sT, sS))
a("s_lshl_b32 s%d, s%d, 13" % (sT, sT))
a("s_add_u32 s%d, s%d, 0x%x" % (sT2, sT, ML_OFF))
a("buffer_store_dwordx2 %s, v%d, %s, s%d offen sc1" % (vr(NEGMC, 2), L8, SRD_W, sT2))
for i in range(16):
    a("v_cvt_pk_bf16_f32 v%d, v%d, v%d" % (64 + i, OA + 2 * i, OA + 2 * i + 1))
    if i % 4 == 3:
        a("buffer_store_dwordx4 %s, v%d, %s, s%d offen offset:%d sc1" % (vr(64 + i - 3, 4), L16, SRD_W, sT, (i // 4) * 1024))
a("s_lshl_b32 s%d, s%d, 3" % (sT3, sU))
a("s_lshr_b32 s%d, s%d, s%d" % (sT2, sBYTE, sT3))
a("s_lshl_b32 s%d, s%d, 2" % (sT3, sGRP))
a("s_add_u32 s%d, s%d, s%d" % (sT3, sT3, sS))
a("s_lshr_b32 s%d, s%d, s%d" % (sT2, sT2, sT3))
a("s_and_b32 s%d, s%d, 1" % (sT2, sT2))
a("v_mov_b32 v84, s%d" % sT2)
a("v_mov_b32 v85, 0")
a("s_add_u32 s%d, s%d, 0x%x" % (sT, sT, FLAG_OFF))
a("s_mov_b64 exec, 1")
a("s_waitcnt vmcnt(0)")
a("buffer_store_dword v84, v85, %s, s%d offen sc1" % (SRD_W, sT))
a("s_mov_b64 exec, -1")
a("s_branch L_recv")
PARK = 65536
a("L_own:")
a("s_lshl_b32 s%d, s%d, 13" % (sT, sGRP))
a("s_add_u32 s%d, s%d, 0x%x" % (sT, sT, PARK))
a("v_add_u32 v84, s%d, v%d" % (sT, L16))
for x in range(8):
    a("ds_write_b128 v84, %s offset:%d" % (vr(OA + 4 * x, 4), x * 1024))
a("v_add_u32 v85, 0x%x, v%d" % (PARK + 16384, L8))
a("ds_write_b64 v85, %s" % vr(NEGMC, 2))
a("L_recv:")
a("s_waitcnt lgkmcnt(0)")
a("s_barrier")
a("s_lshl_b32 s%d, s%d, 11" % (sT, sW))
a("s_add_u32 s%d, s%d, 0x%x" % (sT, sT, PARK))
a("v_add_u32 v20, s%d, v%d" % (sT, L16))
a("v_add_u32 v21, 0x%x, v%d" % (PARK + 16384, L8))
a("ds_read_b128 v[24:27], v20")
a("ds_read_b128 v[28:31], v20 offset:1024")
a("ds_read_b64 v[32:33], v21")
a("s_lshl_b32 s%d, s%d, 3" % (sT3, sS))
a("s_lshr_b32 s%d, s%d, s%d" % (sBYTE, sBYTE, sT3))
a("s_lshl_b32 s%d, s%d, 1" % (sT, sD))
a("s_add_u32 s%d, s%d, s%d" % (sT, sT, sGRP))
a("s_lshl_b32 s%d, s%d, 15" % (sT, sT))
a("s_add_u32 s%d, s%d, 0x%x" % (sT2, sT, FLAG_OFF))
a("v_lshlrev_b32 v21, 13, v%d" % LANE)
a("s_lshl_b32 s%d, s%d, 2" % (sT3, sGRP))
a("s_lshr_b32 s%d, s%d, s%d" % (sT3, sBYTE, sT3))
a("s_and_b32 s%d, s%d, 15" % (sT3, sT3))
a("s_lshl_b32 s%d, 1, s%d" % (sBYTE, sS))
a("s_mov_b32 s%d, 0" % sT4)
a("s_mov_b64 exec, 15")
a("L_poll:")
a("buffer_load_dword v22, v21, %s, s%d offen sc1" % (SRD_W, sT2))
a("s_waitcnt vmcnt(0)")
a("v_and_b32 v22, 1, v22")
a("v_cmp_eq_u32 vcc, 1, v22")
a("s_or_b32 s%d, vcc_lo, s%d" % (sG, sBYTE))
a("s_and_b32 s%d, s%d, 15" % (sG, sG))
a("s_cmp_eq_u32 s%d, s%d" % (sG, sT3))
a("s_cbranch_scc1 L_pollok")
a("s_add_u32 s%d, s%d, 1" % (sT4, sT4))
a("s_cmp_gt_u32 s%d, 0x40000" % sT4)
a("s_cbranch_scc1 L_pollok")
a("s_sleep 1")
a("s_branch L_poll")
a("L_pollok:")
a("s_mov_b64 exec, -1")
stamp()
a("s_lshl_b32 s%d, s%d, 10" % (sT4, sU))
for k in range(1, 4):
    a("s_xor_b32 s%d, s%d, %d" % (sT2, sS, k))
    a("s_lshl_b32 s%d, s%d, 13" % (sT2, sT2))
    a("s_add_u32 s%d, s%d, s%d" % (sT2, sT2, sT))
    a("s_add_u32 s%d, s%d, 0x%x" % (sT3, sT2, ML_OFF))
    a("buffer_load_dwordx2 %s, v%d, %s, s%d offen sc1" % (vr(48 + 2 * (k - 1), 2), L8, SRD_W, sT3))
    a("s_add_u32 s%d, s%d, s%d" % (sT2, sT2, sT4))
    a("buffer_load_dwordx4 %s, v%d, %s, s%d offen sc1" % (vr(4 * (k - 1), 4), L16, SRD_W, sT2))
a("v_and_b32 v60, 31, v%d" % LANE)
a("v_lshlrev_b32 v60, 8, v60")
a("v_lshrrev_b32 v61, 5, v%d" % LANE)
a("v_lshl_add_u32 v60, v61, 4, v60")
a("s_lshl_b32 s%d, s%d, 13" % (sT, sD))
a("s_lshl_b32 s%d, s%d, 5" % (sT2, sW))
a("s_add_u32 s%d, s%d, s%d" % (sT, sT, sT2))
a("s_waitcnt vmcnt(0) lgkmcnt(0)")
a("v_min3_f32 v54, v48, v50, v52")
a("v_min_f32 v54, v54, v32")
a("v_sub_f32 v55, v54, v32")
a("v_sub_f32 v56, v54, v48")
a("v_sub_f32 v57, v54, v50")
a("v_sub_f32 v58, v54, v52")
for r in (55, 56, 57, 58):
    a("v_exp_f32 v%d, v%d" % (r, r))
a("v_mul_f32 v59, v55, v33")
a("v_fmac_f32 v59, v56, v49")
a("v_fmac_f32 v59, v57, v51")
a("v_fmac_f32 v59, v58, v53")
a("v_rcp_f32 v59, v59")
for i in range(8):
    a("v_mul_f32 v%d, v55, v%d" % (24 + i, 24 + i))
for k in range(3):
    for i in range(4):
        src = 4 * k + i
        a("v_lshlrev_b32 v62, 16, v%d" % src)
        a("v_and_b32 v63, 0xffff0000, v%d" % src)
        a("v_fmac_f32 v%d, v%d, v62" % (24 + 2 * i, 56 + k))
        a("v_fmac_f32 v%d, v%d, v63" % (24 + 2 * i + 1, 56 + k))
for i in range(8):
    a("v_mul_f32 v%d, v59, v%d" % (24 + i, 24 + i))
for i in range(4):
    a("v_cvt_pk_bf16_f32 v%d, v%d, v%d" % (64 + i, 24 + 2 * i, 24 + 2 * i + 1))
a("v_permlane32_swap_b32 v64, v66")
a("v_permlane32_swap_b32 v65, v67")
a("buffer_store_dwordx4 v[64:67], v60, %s, s%d offen" % (SRD_O, sT))
if STAMP:
    a("s_waitcnt vmcnt(0)")
    stamp(0)
    a("s_waitcnt lgkmcnt(0)")
    n = nstamp[0]
    for i in range(2 * n):
        a("v_mov_b32 v%d, s%d" % (i, sSTAMP + i))
    a("s_lshl_b32 s%d, s2, 3" % sT)
    a("s_add_u32 s%d, s%d, s%d" % (sT, sT, sW))
    a("s_lshl_b32 s%d, s%d, 7" % (sT, sT))
    a("s_add_u32 s%d, s%d, 0x%x" % (sT, sT, STAMP_BASE))
    a("v_mov_b32 v40, 0")
    a("s_mov_b64 exec, 1")
    for i in range(0, 2 * n, 2):
        a("buffer_store_dwordx2 %s, v40, %s, s%d offen offset:%d" % (vr(i, 2), SRD_W, sT, i * 4))
a("L_end:")
a("s_endpgm")
a("L_rescale:")
a("v_mov_b32 v%d, v%d" % (T0, TMAX))
a("v_permlane32_swap_b32 v%d, v%d" % (T0, TMAX))
a("v_max_f32 v%d, v%d, v%d" % (TMAX, TMAX, T0))
a("v_mul_f32 v%d, 0x%08x, v%d" % (T0, NCB, TMAX))
a("v_min_f32 v%d, v%d, v%d" % (T0, T0, NEGMC))
a("v_sub_f32 v%d, v%d, v%d" % (T0 + 1, T0, NEGMC))
a("v_exp_f32 v%d, v%d" % (T0 + 1, T0 + 1))
a("v_add_f32 v%d, 0x%08x, v%d" % (TMAX, TRAW, TMAX))
a("v_max_f32 v%d, v%d, v%d" % (THR, THR, TMAX))
a("v_mov_b32 v%d, v%d" % (NEGMC, T0))
a("v_mul_f32 v%d, v%d, v%d" % (VL, T0 + 1, VL))
for r in range(64):
    a("v_mul_f32 v%d, v%d, v%d" % (OA + r, T0 + 1, OA + r))
a("s_setpc_b64 s[%d:%d]" % (sRET, sRET + 1))

body = a.finish()
hdr = open("cdna_kernels/%s.s.ref" % NAME).read().split("\n")
head = [l for l in hdr if l.startswith(";") and "@launch" not in l]
txt = "\n".join(head) + "\n"
txt += "; @launch grid=(256,1,1) block=(512,1,1) lds=163840\n"
txt += """.amdgcn_target "amdgcn-amd-amdhsa--gfx950"
.text
.globl {n}_kernel
.p2align 8
.type {n}_kernel,@function
{n}_kernel:
""".format(n=NAME)
txt += body
txt += """.section .rodata,"a"
.p2align 6
.amdhsa_kernel {n}_kernel
  .amdhsa_next_free_vgpr 256
  .amdhsa_next_free_sgpr 102
  .amdhsa_accum_offset 256
  .amdhsa_group_segment_fixed_size 0
  .amdhsa_kernarg_size 48
  .amdhsa_user_sgpr_count 2
  .amdhsa_user_sgpr_kernarg_segment_ptr 1
  .amdhsa_system_sgpr_workgroup_id_x 1
.end_amdhsa_kernel
""".format(n=NAME)
open(OUT, "w").write(txt)
print("wrote", OUT, "instrs", len(a.ins), "nops", a.nnops, "stamps", nstamp[0])
```

```python
import sys, struct, math
from asmlib import Asm

NAME = "standalone__gqa_softmax__near_ridge"
argv = sys.argv[1:]
def opt(name, default):
    for x in argv:
        if x.startswith("--%s=" % name):
            return int(x.split("=")[1])
    return default
STAMP = opt("stamp", 0)
D = opt("d", 3)
D0 = opt("d0", 2)
ADDY = opt("addy", 0)
DMAX = opt("dmax", 0)
PRIO = opt("prio", 0)
TLOG = opt("t", 6)
OUT = [x for x in argv if not x.startswith("--")]
OUT = OUT[0] if OUT else "cdna_kernels/%s.s" % NAME

def fbits(x):
    return struct.unpack("<I", struct.pack("<f", x))[0]
SCALE = (128 ** -0.5) * math.log2(math.e)
CB = fbits(SCALE)
NCB = fbits(-SCALE)
TRAW = fbits(TLOG / SCALE)

MSG = 8192
ML_OFF = 4096
FLAG_OFF = 6144
STAMP_BASE = 64 << 20
QBASE = 131072

a = Asm()
def vr(b, n):
    return "v[%d:%d]" % (b, b + n - 1)
OA = 0
QF = 64
KF = 96
VF = 128
SB = 160
PB = 176
KA = 184
VA = 192
VOFFK0, VOFFK1, VOFFV = 196, 197, 198
LANE = 199
NEGMC, VL = 200, 201
THR, TMAX = 202, 203
T0 = 204
VFLAG, VFT, VDBG = 220, 221, 222
L16, L8 = 223, 224
XW, XR = 225, 226
NVGPR = 232

sW, sP, sS, sQG, sU, sGRP = 40, 41, 42, 43, 44, 45
sKB, sQB, sM0B, sT, sG, sD, sBYTE = 46, 47, 48, 49, 51, 52, 53
sT2, sT3, sT4, sOOB = 54, 55, 56, 57
sRET = 58
sSTAMP = 60
SRD_K, SRD_V, SRD_Q, SRD_O, SRD_W, SRD_D = "s[16:19]", "s[20:23]", "s[24:27]", "s[28:31]", "s[32:35]", "s[36:39]"

vm, lg = [], []
def vmem(tag, text):
    a(text); vm.append(tag)
def ds(tag, text):
    a(text); lg.append(tag)
def cnt(lst, tag):
    idx = max(i for i, t in enumerate(lst) if t == tag)
    return len(lst) - 1 - idx
def wait(v=None, l=None):
    s = "s_waitcnt"
    if v is not None:
        s += " vmcnt(%d)" % (0 if v == 0 else cnt(vm, v))
    if l is not None:
        s += " lgkmcnt(%d)" % (0 if l == 0 else min(15, cnt(lg, l)))
    a(s)
def emit(x):
    if callable(x):
        x()
    elif isinstance(x, tuple):
        (ds if x[0] == "ds" else vmem)(x[1], x[2])
    else:
        a(x)
def weight(x):
    if callable(x):
        return 3
    t = x[2] if isinstance(x, tuple) else x
    return 2 if t.startswith("v_exp") else 1
def weave(mf, fill):
    fill = list(fill)
    tot = sum(weight(x) for x in fill)
    done = 0
    for k, text in enumerate(mf):
        emit(text)
        target = tot * (k + 1) / len(mf)
        while fill and done + weight(fill[0]) / 2 <= target:
            done += weight(fill[0])
            emit(fill.pop(0))
    for x in fill:
        emit(x)

nstamp = [0]
def stamp(level=1):
    if STAMP and (level == 0 or level == STAMP) and nstamp[0] < 15 + (level == 0):
        a(("s_memtime" if level >= 3 else "s_memrealtime") + " s[%d:%d]" % (sSTAMP + 2 * nstamp[0], sSTAMP + 2 * nstamp[0] + 1))
        nstamp[0] += 1

def dma_unit(n):
    out = []
    slot = (n & 3) * 16384
    def k(n=n, slot=slot):
        a("s_add_u32 m0, s%d, 0x%x" % (sM0B, slot))
        a("s_add_u32 s%d, s%d, 0x%x" % (sT, sKB, n * 16384))
        vmem("K%d" % n, "buffer_load_dwordx4 v%d, %s, s%d offen lds" % (VOFFK0, SRD_K, sT))
        vmem("K%d" % n, "buffer_load_dwordx4 v%d, %s, s%d offen offset:1024 lds" % (VOFFK1, SRD_K, sT))
    def v(n=n, slot=slot):
        a("s_add_u32 m0, s%d, 0x%x" % (sM0B, slot + 8192))
        a("s_add_u32 s%d, s%d, 0x%x" % (sT, sKB, n * 16384))
        vmem("U%d" % n, "buffer_load_dwordx4 v%d, %s, s%d offen lds" % (VOFFV, SRD_V, sT))
        vmem("U%d" % n, "buffer_load_dwordx4 v%d, %s, s%d offen offset:1024 lds" % (VOFFV, SRD_V, sT))
    return [k, v]

a("s_cmp_ge_u32 s2, 0x100")
a("s_cbranch_scc1 L_end")
a("s_load_dwordx8 s[4:11], s[0:1], 0")
a("s_load_dwordx4 s[12:15], s[0:1], 32")
stamp(0)
a("v_lshrrev_b32 v1, 6, v0")
a("v_and_b32 v%d, 63, v0" % LANE)
a("v_readfirstlane_b32 s%d, v1" % sW)
a("s_and_b32 s%d, s2, 7" % sT)
a("s_lshr_b32 s%d, s2, 3" % sT2)
a("s_lshl_b32 s%d, s%d, 2" % (sP, sT))
a("s_lshr_b32 s%d, s%d, 3" % (sT3, sT2))
a("s_add_u32 s%d, s%d, s%d" % (sP, sP, sT3))
a("s_and_b32 s%d, s%d, 3" % (sS, sT2))
a("s_bfe_u32 s%d, s%d, 0x10002" % (sQG, sT2))
a("s_and_b32 s%d, s%d, 3" % (sU, sW))
a("s_lshr_b32 s%d, s%d, 2" % (sGRP, sW))
a("s_lshl_b32 s%d, s%d, 19" % (sKB, sP))
a("s_lshl_b32 s%d, s%d, 17" % (sT, sS))
a("s_add_u32 s%d, s%d, s%d" % (sKB, sKB, sT))
a("s_lshl_b32 s%d, s%d, 13" % (sT, sGRP))
a("s_add_u32 s%d, s%d, s%d" % (sKB, sKB, sT))
a("s_lshl_b32 s%d, s%d, 1" % (sG, sP))
a("s_add_u32 s%d, s%d, s%d" % (sG, sG, sQG))
a("s_lshl_b32 s%d, s%d, 15" % (sQB, sG))
a("s_lshl_b32 s%d, s%d, 14" % (sT, sGRP))
a("s_add_u32 s%d, s%d, s%d" % (sQB, sQB, sT))
a("s_lshl_b32 s%d, s%d, 11" % (sT3, sU))
a("s_add_u32 s%d, s%d, s%d" % (sT4, sT3, sT))
a("s_lshl_b32 s%d, s%d, 16" % (sM0B, sGRP))
a("s_add_u32 s%d, s%d, s%d" % (sM0B, sM0B, sT3))
a("v_lshrrev_b32 v1, 4, v%d" % LANE)
a("s_lshl_b32 s%d, s%d, 3" % (sT, sU))
a("v_add_u32 v1, s%d, v1" % sT)
a("v_and_b32 v2, 15, v%d" % LANE)
a("v_and_b32 v3, 15, v1")
a("v_xor_b32 v3, v2, v3")
a("v_lshlrev_b32 v3, 4, v3")
a("v_lshl_add_u32 v%d, v1, 8, v3" % VOFFK0)
a("v_xor_b32 v%d, 64, v%d" % (VOFFK1, VOFFK0))
a("v_and_b32 v3, 3, v1")
a("v_lshlrev_b32 v3, 2, v3")
a("v_xor_b32 v3, v2, v3")
a("v_lshlrev_b32 v3, 4, v3")
a("v_lshl_add_u32 v%d, v1, 8, v3" % VOFFV)
for srd, size in ((16, 16 << 20), (24, 2 << 20), (20, 16 << 20)):
    a("s_mov_b32 s%d, 0x%x" % (srd + 2, size))
    a("s_mov_b32 s%d, 0x20000" % (srd + 3))
a("s_waitcnt lgkmcnt(0)")
for srd, ptr in ((16, 6), (24, 4), (20, 8)):
    a("s_mov_b32 s%d, s%d" % (srd, ptr))
    a("s_and_b32 s%d, s%d, 0xffff" % (srd + 1, ptr + 1))
for x in range(2):
    a("s_add_u32 m0, s%d, 0x%x" % (sT4, QBASE + x * 8192))
    a("s_add_u32 s%d, s%d, 0x%x" % (sT, sQB, x * 8192))
    vmem("Q", "buffer_load_dwordx4 v%d, %s, s%d offen lds" % (VOFFK0, SRD_Q, sT))
    vmem("Q", "buffer_load_dwordx4 v%d, %s, s%d offen offset:1024 lds" % (VOFFK1, SRD_Q, sT))
for n in range(D0):
    for f in dma_unit(n):
        f()
stamp()
for srd, ptr, size in ((28, 10, 2 << 20), (32, 14, 256 << 20), (36, 12, 256)):
    a("s_mov_b32 s%d, s%d" % (srd, ptr))
    a("s_and_b32 s%d, s%d, 0xffff" % (srd + 1, ptr + 1))
    a("s_mov_b32 s%d, 0x%x" % (srd + 2, size))
    a("s_mov_b32 s%d, 0x20000" % (srd + 3))
a("s_lshl_b32 s%d, s%d, 2" % (sD, sG))
a("s_add_u32 s%d, s%d, s%d" % (sD, sD, sS))
a("v_and_b32 v4, 7, v%d" % LANE)
a("v_lshlrev_b32 v4, 13, v4")
a("s_lshl_b32 s%d, s%d, 16" % (sT2, sD))
a("s_add_u32 s%d, s%d, 0x%x" % (sT2, sT2, FLAG_OFF))
a("s_cmp_eq_u32 s%d, 0" % sW)
a("s_cselect_b32 s%d, 0, 0x40000000" % sOOB)
a("s_add_u32 s%d, s%d, s%d" % (sT2, sT2, sOOB))
a("s_mov_b64 exec, 0xff")
vmem("F", "buffer_load_dword v%d, v4, %s, s%d offen sc1" % (VFLAG, SRD_W, sT2))
a("s_mov_b64 exec, -1")
a("v_and_b32 v1, 31, v%d" % LANE)
a("v_lshrrev_b32 v2, 5, v%d" % LANE)
a("v_and_b32 v3, 15, v1")
a("v_xor_b32 v3, v2, v3")
a("v_lshlrev_b32 v3, 4, v3")
a("v_lshl_add_u32 v3, v1, 8, v3")
a("s_lshl_b32 s%d, s%d, 16" % (sT, sGRP))
a("s_lshl_b32 s%d, s%d, 13" % (sT2, sU))
a("s_add_u32 s%d, s%d, 0x%x" % (sT2, sT2, QBASE))
for ks in range(8):
    a("v_xor_b32 v5, 0x%x, v3" % (ks << 5))
    a("v_add_u32 v%d, s%d, v5" % (KA + ks, sT))
    a("v_add_u32 v%d, s%d, v5" % (T0 + ks, sT2))
a("v_and_b32 v1, 15, v%d" % LANE)
a("v_lshrrev_b32 v3, 2, v1")
a("v_lshl_add_u32 v4, v2, 2, v3")
a("v_lshlrev_b32 v4, 8, v4")
a("v_bfe_u32 v5, v%d, 4, 1" % LANE)
a("v_lshl_add_u32 v4, v5, 5, v4")
a("v_and_b32 v5, 3, v1")
a("v_lshl_add_u32 v4, v5, 3, v4")
a("s_add_u32 s%d, s%d, 0x2000" % (sT, sT))
a("v_add_u32 v4, s%d, v4" % sT)
for dt in range(4):
    a("v_xor_b32 v5, %d, v3" % dt)
    a("v_lshl_add_u32 v%d, v5, 6, v4" % (VA + dt))
a("v_lshlrev_b32 v%d, 4, v%d" % (L16, LANE))
a("v_lshlrev_b32 v%d, 3, v%d" % (L8, LANE))
a("s_lshl_b32 s%d, s%d, 9" % (sT, sW))
a("s_add_u32 s%d, s%d, 0x%x" % (sT, sT, 49152))
a("s_xor_b32 s%d, s%d, 0x800" % (sT2, sT))
a("v_add_u32 v%d, s%d, v%d" % (XW, sT, L8))
a("v_add_u32 v%d, s%d, v%d" % (XR, sT2, L8))
a("v_mov_b32 v%d, 0" % VL)
if PRIO:
    a("s_cmp_eq_u32 s%d, %d" % (sGRP, PRIO - 1))
    a("s_cbranch_scc0 L_noprio")
    a("s_setprio 1")
    a("L_noprio:")
a("s_cmp_eq_u32 s%d, 0" % sGRP)
a("s_cbranch_scc1 L_g1start")
wait(v="Q")
a("s_barrier")
a("L_g1start:")
wait(v="U0")
a("s_barrier")
stamp()

def S(i):
    return "v%d" % (SB + i)
def kreads(n):
    return [("ds", "k", "ds_read_b128 %s, v%d offset:%d" % (vr(KF + 4 * ks, 4), KA + ks, (n & 3) * 16384)) for ks in range(8)]
def vfr(t, dt):
    return VF + t * 16 + dt * 4
def vreads(n):
    out = []
    for t in range(2):
        for dt in range(4):
            for sec in range(2):
                out.append(("ds", "v", "ds_read_b64_tr_b16 %s, v%d offset:%d" % (
                    vr(vfr(t, dt) + 2 * sec, 2), VA + dt, (n & 3) * 16384 + t * 4096 + sec * 2048)))
    return out
def qk():
    return ["v_mfma_f32_32x32x16_bf16 %s, %s, %s, %s" % (vr(SB, 16), vr(KF + 4 * ks, 4), vr(QF + 4 * ks, 4), vr(SB, 16) if ks else "0")
            for ks in range(8)]
def pv(first, order=None):
    out = []
    order = order or [(t, dt) for t in range(2) for dt in range(4)]
    for t, dt in order:
        acc = vr(OA + 16 * dt, 16)
        out.append("v_mfma_f32_32x32x16_bf16 %s, %s, %s, %s" % (acc, vr(vfr(t, dt), 4), vr(PB + 4 * t, 4), "0" if (first and t == 0) else acc))
    return out
def adds():
    return ["v_add_f32 v%d, v%d, %s" % (VL, VL, S(i)) for i in range(16)]
def maxes():
    seq = ["v_max3_f32 v%d, %s, %s, %s" % (TMAX, S(0), S(1), S(2))]
    for i in range(3, 15, 2):
        seq.append("v_max3_f32 v%d, v%d, %s, %s" % (TMAX, TMAX, S(i), S(i + 1)))
    seq.append("v_max_f32 v%d, v%d, %s" % (TMAX, TMAX, S(15)))
    return seq
def exps(withadds):
    fma = ["v_fmamk_f32 %s, %s, 0x%08x, v%d" % (S(i), S(i), CB, NEGMC) for i in range(16)]
    ex = ["v_exp_f32 %s, %s" % (S(i), S(i)) for i in range(16)]
    cv = ["v_cvt_pk_bf16_f32 v%d, %s, %s" % (PB + i, S(2 * i), S(2 * i + 1)) for i in range(8)]
    ad = adds()
    seq = fma[:2]
    for i in range(16):
        seq.append(ex[i])
        if i + 2 < 16:
            seq.append(fma[i + 2])
        if withadds and i >= 1:
            seq.append(ad[i - 1])
        if i >= 2 and i % 2 == 0:
            seq.append(cv[i // 2 - 1])
    if withadds:
        seq.append(ad[15])
    seq.append(cv[7])
    return seq
def merge(xs, ys):
    out = []
    n, m = len(xs), len(ys)
    k = 0
    for i, x in enumerate(xs):
        out.append(x)
        while k < m and (k + 1) * n <= (i + 1) * m:
            out.append(ys[k]); k += 1
    out += ys[k:]
    return out

def publish():
    wait(v="F")
    a("v_and_b32 v%d, 1, v%d" % (VFLAG, VFLAG))
    a("v_cmp_eq_u32 vcc, 0, v%d" % VFLAG)
    a("s_lshl_b32 s%d, 0x11, s%d" % (sT2, sS))
    a("s_and_b32 s%d, vcc_lo, 0xff" % sBYTE)
    a("s_or_b32 s%d, s%d, s%d" % (sBYTE, sBYTE, sT2))
    a("v_mov_b32 v%d, s%d" % (VFLAG, sBYTE))
    a("v_mov_b32 v%d, s%d" % (VFT, sD))
    a("s_mov_b64 exec, 1")
    vmem("PUB", "buffer_store_byte v%d, v%d, %s, s%d offen sc1" % (VFLAG, VFT, SRD_D, sOOB))
    a("s_mov_b64 exec, -1")
def dbgload():
    a("v_lshlrev_b32 v%d, 2, s%d" % (VDBG, sG))
    a("s_mov_b64 exec, 1")
    vmem("DBG", "buffer_load_dword v%d, v%d, %s, s%d offen sc1" % (VDBG, VDBG, SRD_D, sOOB))
    a("s_mov_b64 exec, -1")
DBG_LDS = 32768
def dbgcheck():
    wait(v=0)
    a("s_cmp_lg_u32 s%d, 0" % sW)
    a("s_cbranch_scc1 L_dbgdone")
    a("s_mov_b32 s%d, 0" % sT4)
    a("L_dbgpoll:")
    a("v_readfirstlane_b32 s%d, v%d" % (sBYTE, VDBG))
    a("s_and_b32 s%d, s%d, 0x08040201" % (sT2, sBYTE))
    a("s_cmp_eq_u32 s%d, 0x08040201" % sT2)
    a("s_cbranch_scc1 L_dbgok")
    a("s_add_u32 s%d, s%d, 1" % (sT4, sT4))
    a("s_cmp_gt_u32 s%d, 0x40000" % sT4)
    a("s_cbranch_scc1 L_dbgok")
    a("s_sleep 2")
    a("v_lshlrev_b32 v%d, 2, s%d" % (VDBG, sG))
    a("s_mov_b64 exec, 1")
    a("buffer_load_dword v%d, v%d, %s, 0 offen sc1" % (VDBG, VDBG, SRD_D))
    a("s_mov_b64 exec, -1")
    a("s_waitcnt vmcnt(0)")
    a("s_branch L_dbgpoll")
    a("L_dbgok:")
    a("v_mov_b32 v%d, 0x%x" % (VFT, DBG_LDS))
    a("s_mov_b64 exec, 1")
    a("ds_write_b32 v%d, v%d" % (VFT, VDBG))
    a("s_mov_b64 exec, -1")
    a("L_dbgdone:")

def lsum_write():
    a("v_mov_b32 v%d, v%d" % (T0, VL))
    a("v_permlane32_swap_b32 v%d, v%d" % (T0, VL))
    a("v_add_f32 v%d, v%d, v%d" % (VL, VL, T0))
    ds("mlw", "ds_write_b64 v%d, %s" % (XW, vr(NEGMC, 2)))

def fmamax():
    fma = ["v_fmamk_f32 %s, %s, 0x%08x, v%d" % (S(i), S(i), CB, NEGMC) for i in range(16)]
    mx = maxes()
    seq = fma[:5]
    k = 5
    for m in mx:
        seq.append(m)
        seq += fma[k:k + 2]
        k += 2
    return seq
def exps2(withadds):
    ex = ["v_exp_f32 %s, %s" % (S(i), S(i)) for i in range(16)]
    cv = ["v_cvt_pk_bf16_f32 v%d, %s, %s" % (PB + i, S(2 * i), S(2 * i + 1)) for i in range(8)]
    ad = adds()
    seq = []
    for i in range(16):
        seq.append(ex[i])
        if withadds and i >= 1:
            seq.append(ad[i - 1])
        if i >= 2 and i % 2 == 0:
            seq.append(cv[i // 2 - 1])
    if withadds:
        seq.append(ad[15])
    seq.append(cv[7])
    return seq
issued = D0
def next_dmas(n):
    global issued
    out = []
    lim = min(7, n + D)
    c = 0
    while issued <= lim and c < 2:
        out += dma_unit(issued)
        issued += 1
        c += 1
    return out
for n in range(8):
    if n == 0:
        for ks in range(8):
            ds("q%d" % ks, "ds_read_b128 %s, v%d" % (vr(QF + 4 * ks, 4), T0 + ks))
            x = kreads(0)[ks]
            ds("k%d" % ks, x[2])
        vrd = vreads(0)
        for ks, m in enumerate(qk()):
            wait(l="k%d" % ks)
            a(m)
            emit(vrd[2 * ks]); emit(vrd[2 * ks + 1])
    else:
        m = pv(n == 1)
        weave(m[:4], kreads(n))
        weave(m[4:], adds() if not ADDY else [])
        wait(l="k")
        weave(qk(), vreads(n))
    wait(l=0)
    stamp(3 if n in (3, 4) else 99)
    a("s_barrier")
    stamp(2)
    stamp(3 if n in (3, 4) else 99)
    dm = next_dmas(n)
    if n == 0:
        for x in maxes():
            a(x)
        a("v_mov_b32 v%d, v%d" % (T0, TMAX))
        a("v_permlane32_swap_b32 v%d, v%d" % (T0, TMAX))
        a("v_max_f32 v%d, v%d, v%d" % (TMAX, TMAX, T0))
        a("v_mul_f32 v%d, 0x%08x, v%d" % (NEGMC, NCB, TMAX))
        for x in exps(ADDY):
            a(x)
        for f in dm:
            f()
    else:
        for x in fmamax():
            a(x)
        a("v_cmp_lt_f32 vcc, 0x%08x, v%d" % (fbits(float(TLOG)), TMAX))
        for f in dm:
            f()
        a("s_cbranch_vccz L_nors%d" % n)
        a("s_call_b64 s[%d:%d], L_rescale" % (sRET, sRET + 1))
        a("L_nors%d:" % n)
        for x in exps2(ADDY or n == 7):
            a(x)
    if n == 2:
        publish()
    if n == 5:
        dbgload()
    if n == 6:
        dbgcheck()
        wait(l=0)
    elif n == 7:
        lsum_write()
        wait(l=0)
    else:
        wait(v="U%d" % (n + 1))
    stamp(3 if n in (3, 4) else 99)
    a("s_barrier")
    stamp(2)
    stamp(3 if n in (3, 4) else 99)

HS = T0 + 8
A1, A2 = T0 + 2, T0 + 3
def coeffs():
    a("v_min_f32 v%d, v%d, v%d" % (T0 + 4, NEGMC, T0))
    a("v_sub_f32 v%d, v%d, v%d" % (A1, T0 + 4, NEGMC))
    a("v_sub_f32 v%d, v%d, v%d" % (A2, T0 + 4, T0))
    a("v_exp_f32 v%d, v%d" % (A1, A1))
    a("v_exp_f32 v%d, v%d" % (A2, A2))
    a("v_mov_b32 v%d, v%d" % (NEGMC, T0 + 4))
    a("v_mul_f32 v%d, v%d, v%d" % (VL, A1, VL))
    a("v_fmac_f32 v%d, v%d, v%d" % (VL, A2, T0 + 1))
a("s_lshl_b32 s%d, s%d, 13" % (sT, sU))
a("v_add_u32 v%d, s%d, v%d" % (HS, sT, L16))
a("v_add_u32 v%d, 0x%x, v%d" % (HS + 1, QBASE, HS))
a("s_cmp_eq_u32 s%d, 0" % sGRP)
a("s_cbranch_scc0 L_g2fin")
m = pv(False, [(0, 2), (0, 3), (1, 2), (1, 3), (0, 0), (0, 1), (1, 0), (1, 1)])
for x in m[:6]:
    a(x)
wr = ["ds_write_b128 v%d, %s offset:%d" % (HS + 1, vr(OA + 32 + 4 * x, 4), x * 1024) for x in range(8)]
weave(m[6:], wr)
a("s_waitcnt lgkmcnt(0)")
a("s_barrier")
a("ds_read_b64 %s, v%d" % (vr(T0, 2), XR))
a("v_mov_b32 v%d, 0x%x" % (VFT, DBG_LDS))
a("ds_read_b32 v%d, v%d" % (VDBG, VFT))
a("s_waitcnt lgkmcnt(0)")
coeffs()
for r in range(32):
    a("v_mul_f32 v%d, v%d, v%d" % (OA + r, A1, OA + r))
a("s_barrier")
for x in range(8):
    a("ds_read_b128 %s, v%d offset:%d" % (vr(KF + 4 * x, 4), HS, x * 1024))
for x in range(8):
    a("s_waitcnt lgkmcnt(%d)" % (7 - x))
    for r in range(4):
        a("v_fmac_f32 v%d, v%d, v%d" % (OA + 4 * x + r, A2, KF + 4 * x + r))
a("s_branch L_fin")
a("L_g2fin:")
a("ds_read_b64 %s, v%d" % (vr(T0, 2), XR))
a("v_mov_b32 v%d, 0x%x" % (VFT, DBG_LDS))
a("ds_read_b32 v%d, v%d" % (VDBG, VFT))
for x in range(8):
    a("ds_read_b128 %s, v%d offset:%d" % (vr(KF + 4 * x, 4), HS + 1, x * 1024))
m = pv(False, [(0, 0), (0, 1), (1, 0), (1, 1), (0, 2), (0, 3), (1, 2), (1, 3)])
for x in m[:3]:
    a(x)
a("s_waitcnt lgkmcnt(8)")
coeffs()
a(m[3])
a("s_waitcnt lgkmcnt(0)")
mu = ["v_mul_f32 v%d, v%d, v%d" % (KF + r, A2, KF + r) for r in range(32)]
weave(m[4:6], mu[:12])
wr = ["ds_write_b128 v%d, %s offset:%d" % (HS, vr(OA + 4 * x, 4), x * 1024) for x in range(8)]
weave(m[6:], wr)
for x in mu[12:]:
    a(x)
a("s_waitcnt lgkmcnt(0)")
a("s_barrier")
for r in range(32):
    a("v_fma_f32 v%d, v%d, v%d, v%d" % (OA + r, A1, OA + 32 + r, KF + r))
a("L_fin:")
stamp()
a("v_readfirstlane_b32 s%d, v%d" % (sBYTE, VDBG))
a("s_cmp_eq_u32 s%d, s%d" % (sU, sS))
a("s_cbranch_scc1 L_own")
a("s_lshl_b32 s%d, s%d, 2" % (sT, sG))
a("s_add_u32 s%d, s%d, s%d" % (sT, sT, sU))
a("s_lshl_b32 s%d, s%d, 1" % (sT, sT))
a("s_add_u32 s%d, s%d, s%d" % (sT, sT, sGRP))
a("s_lshl_b32 s%d, s%d, 2" % (sT, sT))
a("s_add_u32 s%d, s%d, s%d" % (sT, sT, sS))
a("s_lshl_b32 s%d, s%d, 13" % (sT, sT))
a("s_add_u32 s%d, s%d, 0x%x" % (sT2, sT, ML_OFF))
a("buffer_store_dwordx2 %s, v%d, %s, s%d offen sc1" % (vr(NEGMC, 2), L8, SRD_W, sT2))
for i in range(16):
    a("v_cvt_pk_bf16_f32 v%d, v%d, v%d" % (64 + i, OA + 2 * i, OA + 2 * i + 1))
    if i % 4 == 3:
        a("buffer_store_dwordx4 %s, v%d, %s, s%d offen offset:%d sc1" % (vr(64 + i - 3, 4), L16, SRD_W, sT, (i // 4) * 1024))
a("s_lshl_b32 s%d, s%d, 3" % (sT3, sU))
a("s_lshr_b32 s%d, s%d, s%d" % (sT2, sBYTE, sT3))
a("s_lshl_b32 s%d, s%d, 2" % (sT3, sGRP))
a("s_add_u32 s%d, s%d, s%d" % (sT3, sT3, sS))
a("s_lshr_b32 s%d, s%d, s%d" % (sT2, sT2, sT3))
a("s_and_b32 s%d, s%d, 1" % (sT2, sT2))
a("v_mov_b32 v84, s%d" % sT2)
a("v_mov_b32 v85, 0")
a("s_add_u32 s%d, s%d, 0x%x" % (sT, sT, FLAG_OFF))
a("s_mov_b64 exec, 1")
a("s_waitcnt vmcnt(0)")
a("buffer_store_dword v84, v85, %s, s%d offen sc1" % (SRD_W, sT))
a("s_mov_b64 exec, -1")
a("s_branch L_recv")
PARK = 65536
a("L_own:")
a("s_lshl_b32 s%d, s%d, 13" % (sT, sGRP))
a("s_add_u32 s%d, s%d, 0x%x" % (sT, sT, PARK))
a("v_add_u32 v84, s%d, v%d" % (sT, L16))
for x in range(8):
    a("ds_write_b128 v84, %s offset:%d" % (vr(OA + 4 * x, 4), x * 1024))
a("v_add_u32 v85, 0x%x, v%d" % (PARK + 16384, L8))
a("ds_write_b64 v85, %s" % vr(NEGMC, 2))
a("L_recv:")
a("s_waitcnt lgkmcnt(0)")
a("s_barrier")
a("s_lshl_b32 s%d, s%d, 11" % (sT, sW))
a("s_add_u32 s%d, s%d, 0x%x" % (sT, sT, PARK))
a("v_add_u32 v20, s%d, v%d" % (sT, L16))
a("v_add_u32 v21, 0x%x, v%d" % (PARK + 16384, L8))
a("ds_read_b128 v[24:27], v20")
a("ds_read_b128 v[28:31], v20 offset:1024")
a("ds_read_b64 v[32:33], v21")
a("s_lshl_b32 s%d, s%d, 3" % (sT3, sS))
a("s_lshr_b32 s%d, s%d, s%d" % (sBYTE, sBYTE, sT3))
a("s_lshl_b32 s%d, s%d, 1" % (sT, sD))
a("s_add_u32 s%d, s%d, s%d" % (sT, sT, sGRP))
a("s_lshl_b32 s%d, s%d, 15" % (sT, sT))
a("s_add_u32 s%d, s%d, 0x%x" % (sT2, sT, FLAG_OFF))
a("v_lshlrev_b32 v21, 13, v%d" % LANE)
a("s_lshl_b32 s%d, s%d, 2" % (sT3, sGRP))
a("s_lshr_b32 s%d, s%d, s%d" % (sT3, sBYTE, sT3))
a("s_and_b32 s%d, s%d, 15" % (sT3, sT3))
a("s_lshl_b32 s%d, 1, s%d" % (sBYTE, sS))
a("s_mov_b32 s%d, 0" % sT4)
a("s_mov_b64 exec, 15")
a("L_poll:")
a("buffer_load_dword v22, v21, %s, s%d offen sc1" % (SRD_W, sT2))
a("s_waitcnt vmcnt(0)")
a("v_and_b32 v22, 1, v22")
a("v_cmp_eq_u32 vcc, 1, v22")
a("s_or_b32 s%d, vcc_lo, s%d" % (sG, sBYTE))
a("s_and_b32 s%d, s%d, 15" % (sG, sG))
a("s_cmp_eq_u32 s%d, s%d" % (sG, sT3))
a("s_cbranch_scc1 L_pollok")
a("s_add_u32 s%d, s%d, 1" % (sT4, sT4))
a("s_cmp_gt_u32 s%d, 0x40000" % sT4)
a("s_cbranch_scc1 L_pollok")
a("s_sleep 1")
a("s_branch L_poll")
a("L_pollok:")
a("s_mov_b64 exec, -1")
stamp()
a("s_lshl_b32 s%d, s%d, 10" % (sT4, sU))
for k in range(1, 4):
    a("s_xor_b32 s%d, s%d, %d" % (sT2, sS, k))
    a("s_lshl_b32 s%d, s%d, 13" % (sT2, sT2))
    a("s_add_u32 s%d, s%d, s%d" % (sT2, sT2, sT))
    a("s_add_u32 s%d, s%d, 0x%x" % (sT3, sT2, ML_OFF))
    a("buffer_load_dwordx2 %s, v%d, %s, s%d offen sc1" % (vr(48 + 2 * (k - 1), 2), L8, SRD_W, sT3))
    a("s_add_u32 s%d, s%d, s%d" % (sT2, sT2, sT4))
    a("buffer_load_dwordx4 %s, v%d, %s, s%d offen sc1" % (vr(4 * (k - 1), 4), L16, SRD_W, sT2))
a("v_and_b32 v60, 31, v%d" % LANE)
a("v_lshlrev_b32 v60, 8, v60")
a("v_lshrrev_b32 v61, 5, v%d" % LANE)
a("v_lshl_add_u32 v60, v61, 4, v60")
a("s_lshl_b32 s%d, s%d, 13" % (sT, sD))
a("s_lshl_b32 s%d, s%d, 5" % (sT2, sW))
a("s_add_u32 s%d, s%d, s%d" % (sT, sT, sT2))
a("s_waitcnt vmcnt(0) lgkmcnt(0)")
a("v_min3_f32 v54, v48, v50, v52")
a("v_min_f32 v54, v54, v32")
a("v_sub_f32 v55, v54, v32")
a("v_sub_f32 v56, v54, v48")
a("v_sub_f32 v57, v54, v50")
a("v_sub_f32 v58, v54, v52")
for r in (55, 56, 57, 58):
    a("v_exp_f32 v%d, v%d" % (r, r))
a("v_mul_f32 v59, v55, v33")
a("v_fmac_f32 v59, v56, v49")
a("v_fmac_f32 v59, v57, v51")
a("v_fmac_f32 v59, v58, v53")
a("v_rcp_f32 v59, v59")
for i in range(8):
    a("v_mul_f32 v%d, v55, v%d" % (24 + i, 24 + i))
for k in range(3):
    for i in range(4):
        src = 4 * k + i
        a("v_lshlrev_b32 v62, 16, v%d" % src)
        a("v_and_b32 v63, 0xffff0000, v%d" % src)
        a("v_fmac_f32 v%d, v%d, v62" % (24 + 2 * i, 56 + k))
        a("v_fmac_f32 v%d, v%d, v63" % (24 + 2 * i + 1, 56 + k))
for i in range(8):
    a("v_mul_f32 v%d, v59, v%d" % (24 + i, 24 + i))
for i in range(4):
    a("v_cvt_pk_bf16_f32 v%d, v%d, v%d" % (64 + i, 24 + 2 * i, 24 + 2 * i + 1))
a("v_permlane32_swap_b32 v64, v66")
a("v_permlane32_swap_b32 v65, v67")
a("buffer_store_dwordx4 v[64:67], v60, %s, s%d offen" % (SRD_O, sT))
if STAMP:
    a("s_waitcnt vmcnt(0)")
    stamp(0)
    a("s_waitcnt lgkmcnt(0)")
    n = nstamp[0]
    for i in range(2 * n):
        a("v_mov_b32 v%d, s%d" % (i, sSTAMP + i))
    a("s_lshl_b32 s%d, s2, 3" % sT)
    a("s_add_u32 s%d, s%d, s%d" % (sT, sT, sW))
    a("s_lshl_b32 s%d, s%d, 7" % (sT, sT))
    a("s_add_u32 s%d, s%d, 0x%x" % (sT, sT, STAMP_BASE))
    a("v_mov_b32 v40, 0")
    a("s_mov_b64 exec, 1")
    for i in range(0, 2 * n, 2):
        a("buffer_store_dwordx2 %s, v40, %s, s%d offen offset:%d" % (vr(i, 2), SRD_W, sT, i * 4))
a("L_end:")
a("s_endpgm")
a("L_rescale:")
a("v_mov_b32 v%d, v%d" % (T0, TMAX))
a("v_permlane32_swap_b32 v%d, v%d" % (T0, TMAX))
a("v_max3_f32 v%d, v%d, v%d, 0" % (T0, TMAX, T0))
a("v_sub_f32 v%d, 0, v%d" % (T0 + 1, T0))
a("v_exp_f32 v%d, v%d" % (T0 + 1, T0 + 1))
a("v_sub_f32 v%d, v%d, v%d" % (NEGMC, NEGMC, T0))
for r in range(16):
    a("v_sub_f32 %s, %s, v%d" % (S(r), S(r), T0))
a("v_mul_f32 v%d, v%d, v%d" % (VL, T0 + 1, VL))
for r in range(64):
    a("v_mul_f32 v%d, v%d, v%d" % (OA + r, T0 + 1, OA + r))
a("s_setpc_b64 s[%d:%d]" % (sRET, sRET + 1))

body = a.finish()
hdr = open("cdna_kernels/%s.s.ref" % NAME).read().split("\n")
head = [l for l in hdr if l.startswith(";") and "@launch" not in l]
txt = "\n".join(head) + "\n"
txt += "; @launch grid=(256,1,1) block=(512,1,1) lds=163840\n"
txt += """.amdgcn_target "amdgcn-amd-amdhsa--gfx950"
.text
.globl {n}_kernel
.p2align 8
.type {n}_kernel,@function
{n}_kernel:
""".format(n=NAME)
txt += body
txt += """.section .rodata,"a"
.p2align 6
.amdhsa_kernel {n}_kernel
  .amdhsa_next_free_vgpr 256
  .amdhsa_next_free_sgpr 102
  .amdhsa_accum_offset 256
  .amdhsa_group_segment_fixed_size 0
  .amdhsa_kernarg_size 48
  .amdhsa_user_sgpr_count 2
  .amdhsa_user_sgpr_kernarg_segment_ptr 1
  .amdhsa_system_sgpr_workgroup_id_x 1
.end_amdhsa_kernel
""".format(n=NAME)
open(OUT, "w").write(txt)
print("wrote", OUT, "instrs", len(a.ins), "nops", a.nnops, "stamps", nstamp[0])
```

```python
import sys, struct, math
from asmlib import Asm

NAME = "standalone__gqa_softmax__near_ridge"
argv = sys.argv[1:]
def opt(name, default):
    for x in argv:
        if x.startswith("--%s=" % name):
            return int(x.split("=")[1])
    return default
STAMP = opt("stamp", 0)
D = opt("d", 3)
D0 = opt("d0", 2)
ADDY = opt("addy", 0)
DMAX = opt("dmax", 0)
PRIO = opt("prio", 0)
TLOG = opt("t", 6)
OUT = [x for x in argv if not x.startswith("--")]
OUT = OUT[0] if OUT else "cdna_kernels/%s.s" % NAME

def fbits(x):
    return struct.unpack("<I", struct.pack("<f", x))[0]
SCALE = (128 ** -0.5) * math.log2(math.e)
CB = fbits(SCALE)
NCB = fbits(-SCALE)
TRAW = fbits(TLOG / SCALE)

MSG = 8192
ML_OFF = 4096
FLAG_OFF = 6144
STAMP_BASE = 64 << 20
QBASE = 131072

a = Asm()
def vr(b, n):
    return "v[%d:%d]" % (b, b + n - 1)
OA = 0
QF = 64
KF = 96
VF = 128
SB = 160
PB = 176
KA = 184
VA = 192
VOFFK0, VOFFK1, VOFFV = 196, 197, 198
LANE = 199
NEGMC, VL = 200, 201
THR, TMAX = 202, 203
T0 = 204
VFLAG, VFT, VDBG = 220, 221, 222
L16, L8 = 223, 224
XW, XR = 225, 226
NVGPR = 232

sW, sP, sS, sQG, sU, sGRP = 40, 41, 42, 43, 44, 45
sKB, sQB, sM0B, sT, sG, sD, sBYTE = 46, 47, 48, 49, 51, 52, 53
sT2, sT3, sT4, sOOB = 54, 55, 56, 57
sRET = 58
sSTAMP = 60
SRD_K, SRD_V, SRD_Q, SRD_O, SRD_W, SRD_D = "s[16:19]", "s[20:23]", "s[24:27]", "s[28:31]", "s[32:35]", "s[36:39]"

vm, lg = [], []
def vmem(tag, text):
    a(text); vm.append(tag)
def ds(tag, text):
    a(text); lg.append(tag)
def cnt(lst, tag):
    idx = max(i for i, t in enumerate(lst) if t == tag)
    return len(lst) - 1 - idx
def wait(v=None, l=None):
    s = "s_waitcnt"
    if v is not None:
        s += " vmcnt(%d)" % (0 if v == 0 else cnt(vm, v))
    if l is not None:
        s += " lgkmcnt(%d)" % (0 if l == 0 else min(15, cnt(lg, l)))
    a(s)
def emit(x):
    if callable(x):
        x()
    elif isinstance(x, tuple):
        (ds if x[0] == "ds" else vmem)(x[1], x[2])
    else:
        a(x)
def weight(x):
    if callable(x):
        return 3
    t = x[2] if isinstance(x, tuple) else x
    return 2 if t.startswith("v_exp") else 1
def weave(mf, fill):
    fill = list(fill)
    tot = sum(weight(x) for x in fill)
    done = 0
    for k, text in enumerate(mf):
        emit(text)
        target = tot * (k + 1) / len(mf)
        while fill and done + weight(fill[0]) / 2 <= target:
            done += weight(fill[0])
            emit(fill.pop(0))
    for x in fill:
        emit(x)

nstamp = [0]
def stamp(level=1):
    if STAMP == 5:
        if level in (0, 1):
            a("s_memrealtime s[%d:%d]" % (sSTAMP + 2 * nstamp[0], sSTAMP + 2 * nstamp[0] + 1))
            nstamp[0] += 1
            a("s_memtime s[%d:%d]" % (sSTAMP + 2 * nstamp[0], sSTAMP + 2 * nstamp[0] + 1))
            nstamp[0] += 1
        return
    if STAMP and (level == 0 or level == STAMP) and nstamp[0] < 15 + (level == 0):
        a(("s_memtime" if level >= 3 else "s_memrealtime") + " s[%d:%d]" % (sSTAMP + 2 * nstamp[0], sSTAMP + 2 * nstamp[0] + 1))
        nstamp[0] += 1

def dma_unit(n):
    out = []
    slot = (n & 3) * 16384
    def k(n=n, slot=slot):
        a("s_add_u32 m0, s%d, 0x%x" % (sM0B, slot))
        a("s_add_u32 s%d, s%d, 0x%x" % (sT, sKB, n * 16384))
        vmem("K%d" % n, "buffer_load_dwordx4 v%d, %s, s%d offen lds" % (VOFFK0, SRD_K, sT))
        vmem("K%d" % n, "buffer_load_dwordx4 v%d, %s, s%d offen offset:1024 lds" % (VOFFK1, SRD_K, sT))
    def v(n=n, slot=slot):
        a("s_add_u32 m0, s%d, 0x%x" % (sM0B, slot + 8192))
        a("s_add_u32 s%d, s%d, 0x%x" % (sT, sKB, n * 16384))
        vmem("U%d" % n, "buffer_load_dwordx4 v%d, %s, s%d offen lds" % (VOFFV, SRD_V, sT))
        vmem("U%d" % n, "buffer_load_dwordx4 v%d, %s, s%d offen offset:1024 lds" % (VOFFV, SRD_V, sT))
    return [k, v]

a("s_cmp_ge_u32 s2, 0x100")
a("s_cbranch_scc1 L_end")
a("s_load_dwordx8 s[4:11], s[0:1], 0")
a("s_load_dwordx4 s[12:15], s[0:1], 32")
stamp(0)
for _ in range(opt("sleep", 0)):
    a("s_sleep 127")
a("v_lshrrev_b32 v1, 6, v0")
a("v_and_b32 v%d, 63, v0" % LANE)
a("v_readfirstlane_b32 s%d, v1" % sW)
a("s_and_b32 s%d, s2, 7" % sT)
a("s_lshr_b32 s%d, s2, 3" % sT2)
a("s_lshl_b32 s%d, s%d, 2" % (sP, sT))
a("s_lshr_b32 s%d, s%d, 3" % (sT3, sT2))
a("s_add_u32 s%d, s%d, s%d" % (sP, sP, sT3))
a("s_and_b32 s%d, s%d, 3" % (sS, sT2))
a("s_bfe_u32 s%d, s%d, 0x10002" % (sQG, sT2))
a("s_and_b32 s%d, s%d, 3" % (sU, sW))
a("s_lshr_b32 s%d, s%d, 2" % (sGRP, sW))
a("s_lshl_b32 s%d, s%d, 19" % (sKB, sP))
a("s_lshl_b32 s%d, s%d, 17" % (sT, sS))
a("s_add_u32 s%d, s%d, s%d" % (sKB, sKB, sT))
a("s_lshl_b32 s%d, s%d, 13" % (sT, sGRP))
a("s_add_u32 s%d, s%d, s%d" % (sKB, sKB, sT))
a("s_lshl_b32 s%d, s%d, 1" % (sG, sP))
a("s_add_u32 s%d, s%d, s%d" % (sG, sG, sQG))
a("s_lshl_b32 s%d, s%d, 15" % (sQB, sG))
a("s_lshl_b32 s%d, s%d, 14" % (sT, sGRP))
a("s_add_u32 s%d, s%d, s%d" % (sQB, sQB, sT))
a("s_lshl_b32 s%d, s%d, 11" % (sT3, sU))
a("s_add_u32 s%d, s%d, s%d" % (sT4, sT3, sT))
a("s_lshl_b32 s%d, s%d, 16" % (sM0B, sGRP))
a("s_add_u32 s%d, s%d, s%d" % (sM0B, sM0B, sT3))
a("v_lshrrev_b32 v1, 4, v%d" % LANE)
a("s_lshl_b32 s%d, s%d, 3" % (sT, sU))
a("v_add_u32 v1, s%d, v1" % sT)
a("v_and_b32 v2, 15, v%d" % LANE)
a("v_and_b32 v3, 15, v1")
a("v_xor_b32 v3, v2, v3")
a("v_lshlrev_b32 v3, 4, v3")
a("v_lshl_add_u32 v%d, v1, 8, v3" % VOFFK0)
a("v_xor_b32 v%d, 64, v%d" % (VOFFK1, VOFFK0))
a("v_and_b32 v3, 3, v1")
a("v_lshlrev_b32 v3, 2, v3")
a("v_xor_b32 v3, v2, v3")
a("v_lshlrev_b32 v3, 4, v3")
a("v_lshl_add_u32 v%d, v1, 8, v3" % VOFFV)
for srd, size in ((16, 16 << 20), (24, 2 << 20), (20, 16 << 20)):
    a("s_mov_b32 s%d, 0x%x" % (srd + 2, size))
    a("s_mov_b32 s%d, 0x20000" % (srd + 3))
a("s_waitcnt lgkmcnt(0)")
for srd, ptr in ((16, 6), (24, 4), (20, 8)):
    a("s_mov_b32 s%d, s%d" % (srd, ptr))
    a("s_and_b32 s%d, s%d, 0xffff" % (srd + 1, ptr + 1))
for x in range(2):
    a("s_add_u32 m0, s%d, 0x%x" % (sT4, QBASE + x * 8192))
    a("s_add_u32 s%d, s%d, 0x%x" % (sT, sQB, x * 8192))
    vmem("Q", "buffer_load_dwordx4 v%d, %s, s%d offen lds" % (VOFFK0, SRD_Q, sT))
    vmem("Q", "buffer_load_dwordx4 v%d, %s, s%d offen offset:1024 lds" % (VOFFK1, SRD_Q, sT))
for n in range(D0):
    for f in dma_unit(n):
        f()
stamp()
for srd, ptr, size in ((28, 10, 2 << 20), (32, 14, 256 << 20), (36, 12, 256)):
    a("s_mov_b32 s%d, s%d" % (srd, ptr))
    a("s_and_b32 s%d, s%d, 0xffff" % (srd + 1, ptr + 1))
    a("s_mov_b32 s%d, 0x%x" % (srd + 2, size))
    a("s_mov_b32 s%d, 0x20000" % (srd + 3))
a("s_lshl_b32 s%d, s%d, 2" % (sD, sG))
a("s_add_u32 s%d, s%d, s%d" % (sD, sD, sS))
a("v_and_b32 v4, 7, v%d" % LANE)
a("v_lshlrev_b32 v4, 13, v4")
a("s_lshl_b32 s%d, s%d, 16" % (sT2, sD))
a("s_add_u32 s%d, s%d, 0x%x" % (sT2, sT2, FLAG_OFF))
a("s_cmp_eq_u32 s%d, 0" % sW)
a("s_cselect_b32 s%d, 0, 0x40000000" % sOOB)
a("s_add_u32 s%d, s%d, s%d" % (sT2, sT2, sOOB))
a("s_mov_b64 exec, 0xff")
vmem("F", "buffer_load_dword v%d, v4, %s, s%d offen sc1" % (VFLAG, SRD_W, sT2))
a("s_mov_b64 exec, -1")
if opt("touch", 0):
    a("s_lshl_b32 s%d, s%d, 2" % (sT, sG))
    a("s_add_u32 s%d, s%d, s%d" % (sT, sT, sU))
    a("s_lshl_b32 s%d, s%d, 1" % (sT, sT))
    a("s_add_u32 s%d, s%d, s%d" % (sT, sT, sGRP))
    a("s_lshl_b32 s%d, s%d, 2" % (sT, sT))
    a("s_add_u32 s%d, s%d, s%d" % (sT, sT, sS))
    a("s_lshl_b32 s%d, s%d, 13" % (sT, sT))
    a("s_add_u32 s%d, s%d, 0x1e00" % (sT, sT))
    a("s_lshl_b32 s%d, s%d, 13" % (sT2, sD))
    a("v_mov_b32 v4, 0")
    a("s_mov_b64 exec, 1")
    vmem("T1", "buffer_load_dword v%d, v4, %s, s%d offen sc1" % (227, SRD_W, sT))
    vmem("T2", "buffer_load_dword v%d, v4, %s, s%d offen sc1" % (228, SRD_O, sT2))
    a("s_mov_b64 exec, -1")
a("v_and_b32 v1, 31, v%d" % LANE)
a("v_lshrrev_b32 v2, 5, v%d" % LANE)
a("v_and_b32 v3, 15, v1")
a("v_xor_b32 v3, v2, v3")
a("v_lshlrev_b32 v3, 4, v3")
a("v_lshl_add_u32 v3, v1, 8, v3")
a("s_lshl_b32 s%d, s%d, 16" % (sT, sGRP))
a("s_lshl_b32 s%d, s%d, 13" % (sT2, sU))
a("s_add_u32 s%d, s%d, 0x%x" % (sT2, sT2, QBASE))
for ks in range(8):
    a("v_xor_b32 v5, 0x%x, v3" % (ks << 5))
    a("v_add_u32 v%d, s%d, v5" % (KA + ks, sT))
    a("v_add_u32 v%d, s%d, v5" % (T0 + ks, sT2))
a("v_and_b32 v1, 15, v%d" % LANE)
a("v_lshrrev_b32 v3, 2, v1")
a("v_lshl_add_u32 v4, v2, 2, v3")
a("v_lshlrev_b32 v4, 8, v4")
a("v_bfe_u32 v5, v%d, 4, 1" % LANE)
a("v_lshl_add_u32 v4, v5, 5, v4")
a("v_and_b32 v5, 3, v1")
a("v_lshl_add_u32 v4, v5, 3, v4")
a("s_add_u32 s%d, s%d, 0x2000" % (sT, sT))
a("v_add_u32 v4, s%d, v4" % sT)
for dt in range(4):
    a("v_xor_b32 v5, %d, v3" % dt)
    a("v_lshl_add_u32 v%d, v5, 6, v4" % (VA + dt))
a("v_lshlrev_b32 v%d, 4, v%d" % (L16, LANE))
a("v_lshlrev_b32 v%d, 3, v%d" % (L8, LANE))
a("s_lshl_b32 s%d, s%d, 9" % (sT, sW))
a("s_add_u32 s%d, s%d, 0x%x" % (sT, sT, 49152))
a("s_xor_b32 s%d, s%d, 0x800" % (sT2, sT))
a("v_add_u32 v%d, s%d, v%d" % (XW, sT, L8))
a("v_add_u32 v%d, s%d, v%d" % (XR, sT2, L8))
a("v_mov_b32 v%d, 0" % VL)
if PRIO:
    a("s_cmp_eq_u32 s%d, %d" % (sGRP, PRIO - 1))
    a("s_cbranch_scc0 L_noprio")
    a("s_setprio 1")
    a("L_noprio:")
a("s_cmp_eq_u32 s%d, 0" % sGRP)
a("s_cbranch_scc1 L_g1start")
wait(v="Q")
a("s_barrier")
a("L_g1start:")
wait(v="U0")
a("s_barrier")
stamp()

def S(i):
    return "v%d" % (SB + i)
def kreads(n):
    return [("ds", "k", "ds_read_b128 %s, v%d offset:%d" % (vr(KF + 4 * ks, 4), KA + ks, (n & 3) * 16384)) for ks in range(8)]
def vfr(t, dt):
    return VF + t * 16 + dt * 4
def vreads(n):
    out = []
    for t in range(2):
        for dt in range(4):
            for sec in range(2):
                out.append(("ds", "v", "ds_read_b64_tr_b16 %s, v%d offset:%d" % (
                    vr(vfr(t, dt) + 2 * sec, 2), VA + dt, (n & 3) * 16384 + t * 4096 + sec * 2048)))
    return out
def qk():
    return ["v_mfma_f32_32x32x16_bf16 %s, %s, %s, %s" % (vr(SB, 16), vr(KF + 4 * ks, 4), vr(QF + 4 * ks, 4), vr(SB, 16) if ks else "0")
            for ks in range(8)]
def pv(first, order=None):
    out = []
    order = order or [(t, dt) for t in range(2) for dt in range(4)]
    for t, dt in order:
        acc = vr(OA + 16 * dt, 16)
        out.append("v_mfma_f32_32x32x16_bf16 %s, %s, %s, %s" % (acc, vr(vfr(t, dt), 4), vr(PB + 4 * t, 4), "0" if (first and t == 0) else acc))
    return out
def adds():
    return ["v_add_f32 v%d, v%d, %s" % (VL, VL, S(i)) for i in range(16)]
def maxes():
    seq = ["v_max3_f32 v%d, %s, %s, %s" % (TMAX, S(0), S(1), S(2))]
    for i in range(3, 15, 2):
        seq.append("v_max3_f32 v%d, v%d, %s, %s" % (TMAX, TMAX, S(i), S(i + 1)))
    seq.append("v_max_f32 v%d, v%d, %s" % (TMAX, TMAX, S(15)))
    return seq
def exps(withadds):
    fma = ["v_fmamk_f32 %s, %s, 0x%08x, v%d" % (S(i), S(i), CB, NEGMC) for i in range(16)]
    ex = ["v_exp_f32 %s, %s" % (S(i), S(i)) for i in range(16)]
    cv = ["v_cvt_pk_bf16_f32 v%d, %s, %s" % (PB + i, S(2 * i), S(2 * i + 1)) for i in range(8)]
    ad = adds()
    seq = fma[:2]
    for i in range(16):
        seq.append(ex[i])
        if i + 2 < 16:
            seq.append(fma[i + 2])
        if withadds and i >= 1:
            seq.append(ad[i - 1])
        if i >= 2 and i % 2 == 0:
            seq.append(cv[i // 2 - 1])
    if withadds:
        seq.append(ad[15])
    seq.append(cv[7])
    return seq
def merge(xs, ys):
    out = []
    n, m = len(xs), len(ys)
    k = 0
    for i, x in enumerate(xs):
        out.append(x)
        while k < m and (k + 1) * n <= (i + 1) * m:
            out.append(ys[k]); k += 1
    out += ys[k:]
    return out

def publish():
    wait(v="F")
    a("v_and_b32 v%d, 1, v%d" % (VFLAG, VFLAG))
    a("v_cmp_eq_u32 vcc, 0, v%d" % VFLAG)
    a("s_lshl_b32 s%d, 0x11, s%d" % (sT2, sS))
    a("s_and_b32 s%d, vcc_lo, 0xff" % sBYTE)
    a("s_or_b32 s%d, s%d, s%d" % (sBYTE, sBYTE, sT2))
    a("v_mov_b32 v%d, s%d" % (VFLAG, sBYTE))
    a("v_mov_b32 v%d, s%d" % (VFT, sD))
    a("s_mov_b64 exec, 1")
    vmem("PUB", "buffer_store_byte v%d, v%d, %s, s%d offen sc1" % (VFLAG, VFT, SRD_D, sOOB))
    a("s_mov_b64 exec, -1")
def dbgload():
    a("v_lshlrev_b32 v%d, 2, s%d" % (VDBG, sG))
    a("s_mov_b64 exec, 1")
    vmem("DBG", "buffer_load_dword v%d, v%d, %s, s%d offen sc1" % (VDBG, VDBG, SRD_D, sOOB))
    a("s_mov_b64 exec, -1")
DBG_LDS = 32768
def dbgcheck():
    wait(v=0)
    a("s_cmp_lg_u32 s%d, 0" % sW)
    a("s_cbranch_scc1 L_dbgdone")
    a("s_mov_b32 s%d, 0" % sT4)
    a("L_dbgpoll:")
    a("v_readfirstlane_b32 s%d, v%d" % (sBYTE, VDBG))
    a("s_and_b32 s%d, s%d, 0x08040201" % (sT2, sBYTE))
    a("s_cmp_eq_u32 s%d, 0x08040201" % sT2)
    a("s_cbranch_scc1 L_dbgok")
    a("s_add_u32 s%d, s%d, 1" % (sT4, sT4))
    a("s_cmp_gt_u32 s%d, 0x40000" % sT4)
    a("s_cbranch_scc1 L_dbgok")
    a("s_sleep 2")
    a("v_lshlrev_b32 v%d, 2, s%d" % (VDBG, sG))
    a("s_mov_b64 exec, 1")
    a("buffer_load_dword v%d, v%d, %s, 0 offen sc1" % (VDBG, VDBG, SRD_D))
    a("s_mov_b64 exec, -1")
    a("s_waitcnt vmcnt(0)")
    a("s_branch L_dbgpoll")
    a("L_dbgok:")
    a("v_mov_b32 v%d, 0x%x" % (VFT, DBG_LDS))
    a("s_mov_b64 exec, 1")
    a("ds_write_b32 v%d, v%d" % (VFT, VDBG))
    a("s_mov_b64 exec, -1")
    a("L_dbgdone:")

def lsum_write():
    a("v_mov_b32 v%d, v%d" % (T0, VL))
    a("v_permlane32_swap_b32 v%d, v%d" % (T0, VL))
    a("v_add_f32 v%d, v%d, v%d" % (VL, VL, T0))
    ds("mlw", "ds_write_b64 v%d, %s" % (XW, vr(NEGMC, 2)))

def fmamax():
    fma = ["v_fmamk_f32 %s, %s, 0x%08x, v%d" % (S(i), S(i), CB, NEGMC) for i in range(16)]
    mx = maxes()
    seq = fma[:5]
    k = 5
    for m in mx:
        seq.append(m)
        seq += fma[k:k + 2]
        k += 2
    return seq
def exps2(withadds):
    ex = ["v_exp_f32 %s, %s" % (S(i), S(i)) for i in range(16)]
    cv = ["v_cvt_pk_bf16_f32 v%d, %s, %s" % (PB + i, S(2 * i), S(2 * i + 1)) for i in range(8)]
    ad = adds()
    seq = []
    for i in range(16):
        seq.append(ex[i])
        if withadds and i >= 1:
            seq.append(ad[i - 1])
        if i >= 2 and i % 2 == 0:
            seq.append(cv[i // 2 - 1])
    if withadds:
        seq.append(ad[15])
    seq.append(cv[7])
    return seq
issued = D0
def next_dmas(n):
    global issued
    out = []
    lim = min(7, n + D)
    c = 0
    while issued <= lim and c < 2:
        out += dma_unit(issued)
        issued += 1
        c += 1
    return out
for n in range(8):
    if n == 0:
        for ks in range(8):
            ds("q%d" % ks, "ds_read_b128 %s, v%d" % (vr(QF + 4 * ks, 4), T0 + ks))
            x = kreads(0)[ks]
            ds("k%d" % ks, x[2])
        vrd = vreads(0)
        for ks, m in enumerate(qk()):
            wait(l="k%d" % ks)
            a(m)
            emit(vrd[2 * ks]); emit(vrd[2 * ks + 1])
    else:
        m = pv(n == 1)
        weave(m[:4], kreads(n))
        weave(m[4:], adds() if not ADDY else [])
        wait(l="k")
        weave(qk(), vreads(n))
    wait(l=0)
    stamp(3 if n in (3, 4) else 99)
    a("s_barrier")
    stamp(2)
    stamp(3 if n in (3, 4) else 99)
    dm = next_dmas(n)
    if n == 0:
        for x in maxes():
            a(x)
        a("v_mov_b32 v%d, v%d" % (T0, TMAX))
        a("v_permlane32_swap_b32 v%d, v%d" % (T0, TMAX))
        a("v_max_f32 v%d, v%d, v%d" % (TMAX, TMAX, T0))
        a("v_mul_f32 v%d, 0x%08x, v%d" % (NEGMC, NCB, TMAX))
        for x in exps(ADDY):
            a(x)
        for f in dm:
            f()
    else:
        stamp(4 if n in (3, 4) else 99)
        for x in fmamax():
            a(x)
        a("v_cmp_lt_f32 vcc, 0x%08x, v%d" % (fbits(float(TLOG)), TMAX))
        stamp(4 if n in (3, 4) else 99)
        for f in dm:
            f()
        stamp(4 if n in (3, 4) else 99)
        a("s_cbranch_vccz L_nors%d" % n)
        a("s_call_b64 s[%d:%d], L_rescale" % (sRET, sRET + 1))
        a("L_nors%d:" % n)
        stamp(4 if n in (3, 4) else 99)
        for x in exps2(ADDY or n == 7):
            a(x)
        stamp(4 if n in (3, 4) else 99)
    if n == 2:
        publish()
    if n == 5:
        dbgload()
    if n == 6:
        dbgcheck()
        wait(l=0)
    elif n == 7:
        lsum_write()
        wait(l=0)
    else:
        wait(v="U%d" % (n + 1))
    stamp(4 if n in (3, 4) else 99)
    stamp(3 if n in (3, 4) else 99)
    a("s_barrier")
    stamp(2)
    stamp(3 if n in (3, 4) else 99)

HS = T0 + 8
A1, A2 = T0 + 2, T0 + 3
def coeffs():
    a("v_min_f32 v%d, v%d, v%d" % (T0 + 4, NEGMC, T0))
    a("v_sub_f32 v%d, v%d, v%d" % (A1, T0 + 4, NEGMC))
    a("v_sub_f32 v%d, v%d, v%d" % (A2, T0 + 4, T0))
    a("v_exp_f32 v%d, v%d" % (A1, A1))
    a("v_exp_f32 v%d, v%d" % (A2, A2))
    a("v_mov_b32 v%d, v%d" % (NEGMC, T0 + 4))
    a("v_mul_f32 v%d, v%d, v%d" % (VL, A1, VL))
    a("v_fmac_f32 v%d, v%d, v%d" % (VL, A2, T0 + 1))
a("s_lshl_b32 s%d, s%d, 13" % (sT, sU))
a("v_add_u32 v%d, s%d, v%d" % (HS, sT, L16))
a("v_add_u32 v%d, 0x%x, v%d" % (HS + 1, QBASE, HS))
a("s_cmp_eq_u32 s%d, 0" % sGRP)
a("s_cbranch_scc0 L_g2fin")
m = pv(False, [(0, 2), (0, 3), (1, 2), (1, 3), (0, 0), (0, 1), (1, 0), (1, 1)])
for x in m[:6]:
    a(x)
wr = ["ds_write_b128 v%d, %s offset:%d" % (HS + 1, vr(OA + 32 + 4 * x, 4), x * 1024) for x in range(8)]
weave(m[6:], wr)
a("s_waitcnt lgkmcnt(0)")
a("s_barrier")
a("ds_read_b64 %s, v%d" % (vr(T0, 2), XR))
a("v_mov_b32 v%d, 0x%x" % (VFT, DBG_LDS))
a("ds_read_b32 v%d, v%d" % (VDBG, VFT))
a("s_waitcnt lgkmcnt(0)")
coeffs()
for r in range(32):
    a("v_mul_f32 v%d, v%d, v%d" % (OA + r, A1, OA + r))
a("s_barrier")
for x in range(8):
    a("ds_read_b128 %s, v%d offset:%d" % (vr(KF + 4 * x, 4), HS, x * 1024))
for x in range(8):
    a("s_waitcnt lgkmcnt(%d)" % (7 - x))
    for r in range(4):
        a("v_fmac_f32 v%d, v%d, v%d" % (OA + 4 * x + r, A2, KF + 4 * x + r))
a("s_branch L_fin")
a("L_g2fin:")
a("ds_read_b64 %s, v%d" % (vr(T0, 2), XR))
a("v_mov_b32 v%d, 0x%x" % (VFT, DBG_LDS))
a("ds_read_b32 v%d, v%d" % (VDBG, VFT))
for x in range(8):
    a("ds_read_b128 %s, v%d offset:%d" % (vr(KF + 4 * x, 4), HS + 1, x * 1024))
m = pv(False, [(0, 0), (0, 1), (1, 0), (1, 1), (0, 2), (0, 3), (1, 2), (1, 3)])
for x in m[:3]:
    a(x)
a("s_waitcnt lgkmcnt(8)")
coeffs()
a(m[3])
a("s_waitcnt lgkmcnt(0)")
mu = ["v_mul_f32 v%d, v%d, v%d" % (KF + r, A2, KF + r) for r in range(32)]
weave(m[4:6], mu[:12])
wr = ["ds_write_b128 v%d, %s offset:%d" % (HS, vr(OA + 4 * x, 4), x * 1024) for x in range(8)]
weave(m[6:], wr)
for x in mu[12:]:
    a(x)
a("s_waitcnt lgkmcnt(0)")
a("s_barrier")
for r in range(32):
    a("v_fma_f32 v%d, v%d, v%d, v%d" % (OA + r, A1, OA + 32 + r, KF + r))
a("L_fin:")
for _ in range(opt("sleep2", 0)):
    a("s_sleep 127")
stamp()
a("v_readfirstlane_b32 s%d, v%d" % (sBYTE, VDBG))
a("s_cmp_eq_u32 s%d, s%d" % (sU, sS))
a("s_cbranch_scc1 L_own")
a("s_lshl_b32 s%d, s%d, 2" % (sT, sG))
a("s_add_u32 s%d, s%d, s%d" % (sT, sT, sU))
a("s_lshl_b32 s%d, s%d, 1" % (sT, sT))
a("s_add_u32 s%d, s%d, s%d" % (sT, sT, sGRP))
a("s_lshl_b32 s%d, s%d, 2" % (sT, sT))
a("s_add_u32 s%d, s%d, s%d" % (sT, sT, sS))
a("s_lshl_b32 s%d, s%d, 13" % (sT, sT))
a("s_add_u32 s%d, s%d, 0x%x" % (sT2, sT, ML_OFF))
a("buffer_store_dwordx2 %s, v%d, %s, s%d offen sc1" % (vr(NEGMC, 2), L8, SRD_W, sT2))
for i in range(16):
    a("v_cvt_pk_bf16_f32 v%d, v%d, v%d" % (64 + i, OA + 2 * i, OA + 2 * i + 1))
    if i % 4 == 3:
        a("buffer_store_dwordx4 %s, v%d, %s, s%d offen offset:%d sc1" % (vr(64 + i - 3, 4), L16, SRD_W, sT, (i // 4) * 1024))
a("s_lshl_b32 s%d, s%d, 3" % (sT3, sU))
a("s_lshr_b32 s%d, s%d, s%d" % (sT2, sBYTE, sT3))
a("s_lshl_b32 s%d, s%d, 2" % (sT3, sGRP))
a("s_add_u32 s%d, s%d, s%d" % (sT3, sT3, sS))
a("s_lshr_b32 s%d, s%d, s%d" % (sT2, sT2, sT3))
a("s_and_b32 s%d, s%d, 1" % (sT2, sT2))
a("v_mov_b32 v84, s%d" % sT2)
a("v_mov_b32 v85, 0")
a("s_add_u32 s%d, s%d, 0x%x" % (sT, sT, FLAG_OFF))
a("s_mov_b64 exec, 1")
a("s_waitcnt vmcnt(0)")
a("buffer_store_dword v84, v85, %s, s%d offen sc1" % (SRD_W, sT))
a("s_mov_b64 exec, -1")
a("s_branch L_recv")
PARK = 65536
a("L_own:")
a("s_lshl_b32 s%d, s%d, 13" % (sT, sGRP))
a("s_add_u32 s%d, s%d, 0x%x" % (sT, sT, PARK))
a("v_add_u32 v84, s%d, v%d" % (sT, L16))
for x in range(8):
    a("ds_write_b128 v84, %s offset:%d" % (vr(OA + 4 * x, 4), x * 1024))
a("v_add_u32 v85, 0x%x, v%d" % (PARK + 16384, L8))
a("ds_write_b64 v85, %s" % vr(NEGMC, 2))
a("L_recv:")
a("s_waitcnt lgkmcnt(0)")
a("s_barrier")
a("s_lshl_b32 s%d, s%d, 11" % (sT, sW))
a("s_add_u32 s%d, s%d, 0x%x" % (sT, sT, PARK))
a("v_add_u32 v20, s%d, v%d" % (sT, L16))
a("v_add_u32 v21, 0x%x, v%d" % (PARK + 16384, L8))
a("ds_read_b128 v[24:27], v20")
a("ds_read_b128 v[28:31], v20 offset:1024")
a("ds_read_b64 v[32:33], v21")
a("s_lshl_b32 s%d, s%d, 3" % (sT3, sS))
a("s_lshr_b32 s%d, s%d, s%d" % (sBYTE, sBYTE, sT3))
a("s_lshl_b32 s%d, s%d, 1" % (sT, sD))
a("s_add_u32 s%d, s%d, s%d" % (sT, sT, sGRP))
a("s_lshl_b32 s%d, s%d, 15" % (sT, sT))
a("s_add_u32 s%d, s%d, 0x%x" % (sT2, sT, FLAG_OFF))
a("v_lshlrev_b32 v21, 13, v%d" % LANE)
a("s_lshl_b32 s%d, s%d, 2" % (sT3, sGRP))
a("s_lshr_b32 s%d, s%d, s%d" % (sT3, sBYTE, sT3))
a("s_and_b32 s%d, s%d, 15" % (sT3, sT3))
a("s_lshl_b32 s%d, 1, s%d" % (sBYTE, sS))
a("s_mov_b32 s%d, 0" % sT4)
a("s_mov_b64 exec, 15")
a("L_poll:")
a("buffer_load_dword v22, v21, %s, s%d offen sc1" % (SRD_W, sT2))
a("s_waitcnt vmcnt(0)")
a("v_and_b32 v22, 1, v22")
a("v_cmp_eq_u32 vcc, 1, v22")
a("s_or_b32 s%d, vcc_lo, s%d" % (sG, sBYTE))
a("s_and_b32 s%d, s%d, 15" % (sG, sG))
a("s_cmp_eq_u32 s%d, s%d" % (sG, sT3))
a("s_cbranch_scc1 L_pollok")
a("s_add_u32 s%d, s%d, 1" % (sT4, sT4))
a("s_cmp_gt_u32 s%d, 0x40000" % sT4)
a("s_cbranch_scc1 L_pollok")
a("s_sleep 1")
a("s_branch L_poll")
a("L_pollok:")
a("s_mov_b64 exec, -1")
stamp()
a("s_lshl_b32 s%d, s%d, 10" % (sT4, sU))
for k in range(1, 4):
    a("s_xor_b32 s%d, s%d, %d" % (sT2, sS, k))
    a("s_lshl_b32 s%d, s%d, 13" % (sT2, sT2))
    a("s_add_u32 s%d, s%d, s%d" % (sT2, sT2, sT))
    a("s_add_u32 s%d, s%d, 0x%x" % (sT3, sT2, ML_OFF))
    a("buffer_load_dwordx2 %s, v%d, %s, s%d offen sc1" % (vr(48 + 2 * (k - 1), 2), L8, SRD_W, sT3))
    a("s_add_u32 s%d, s%d, s%d" % (sT2, sT2, sT4))
    a("buffer_load_dwordx4 %s, v%d, %s, s%d offen sc1" % (vr(4 * (k - 1), 4), L16, SRD_W, sT2))
a("v_and_b32 v60, 31, v%d" % LANE)
a("v_lshlrev_b32 v60, 8, v60")
a("v_lshrrev_b32 v61, 5, v%d" % LANE)
a("v_lshl_add_u32 v60, v61, 4, v60")
a("s_lshl_b32 s%d, s%d, 13" % (sT, sD))
a("s_lshl_b32 s%d, s%d, 5" % (sT2, sW))
a("s_add_u32 s%d, s%d, s%d" % (sT, sT, sT2))
a("s_waitcnt vmcnt(0) lgkmcnt(0)")
a("v_min3_f32 v54, v48, v50, v52")
a("v_min_f32 v54, v54, v32")
a("v_sub_f32 v55, v54, v32")
a("v_sub_f32 v56, v54, v48")
a("v_sub_f32 v57, v54, v50")
a("v_sub_f32 v58, v54, v52")
for r in (55, 56, 57, 58):
    a("v_exp_f32 v%d, v%d" % (r, r))
a("v_mul_f32 v59, v55, v33")
a("v_fmac_f32 v59, v56, v49")
a("v_fmac_f32 v59, v57, v51")
a("v_fmac_f32 v59, v58, v53")
a("v_rcp_f32 v59, v59")
for i in range(8):
    a("v_mul_f32 v%d, v55, v%d" % (24 + i, 24 + i))
for k in range(3):
    for i in range(4):
        src = 4 * k + i
        a("v_lshlrev_b32 v62, 16, v%d" % src)
        a("v_and_b32 v63, 0xffff0000, v%d" % src)
        a("v_fmac_f32 v%d, v%d, v62" % (24 + 2 * i, 56 + k))
        a("v_fmac_f32 v%d, v%d, v63" % (24 + 2 * i + 1, 56 + k))
for i in range(8):
    a("v_mul_f32 v%d, v59, v%d" % (24 + i, 24 + i))
for i in range(4):
    a("v_cvt_pk_bf16_f32 v%d, v%d, v%d" % (64 + i, 24 + 2 * i, 24 + 2 * i + 1))
a("v_permlane32_swap_b32 v64, v66")
a("v_permlane32_swap_b32 v65, v67")
a("buffer_store_dwordx4 v[64:67], v60, %s, s%d offen" % (SRD_O, sT))
if STAMP:
    a("s_waitcnt vmcnt(0)")
    stamp(0)
    a("s_waitcnt lgkmcnt(0)")
    n = nstamp[0]
    if opt("diag", 0):
        sel = [int(c) for c in str(opt("diag", 0))[1:]]
        a("s_mov_b32 s%d, s%d" % (sT, sSTAMP + 2 * sel[0]))
        for k in range(1, 4):
            a("s_cmp_eq_u32 s%d, %d" % (sS, k))
            a("s_cselect_b32 s%d, s%d, s%d" % (sT, sSTAMP + 2 * sel[k], sT))
        a("s_lshr_b32 s%d, s%d, 4" % (sT, sT))
        a("v_mov_b32 v0, s%d" % sT)
        a("v_mov_b32 v1, s%d" % sD)
        a("s_mov_b64 exec, 1")
        a("buffer_store_byte v0, v1, %s, s%d offen sc1" % (SRD_D, sOOB))
        a("s_endpgm")
    for i in range(2 * n):
        a("v_mov_b32 v%d, s%d" % (i, sSTAMP + i))
    a("s_lshl_b32 s%d, s2, 3" % sT)
    a("s_add_u32 s%d, s%d, s%d" % (sT, sT, sW))
    a("s_lshl_b32 s%d, s%d, 7" % (sT, sT))
    a("s_add_u32 s%d, s%d, 0x%x" % (sT, sT, STAMP_BASE))
    a("v_mov_b32 v40, 0")
    a("s_mov_b64 exec, 1")
    for i in range(0, 2 * n, 2):
        a("buffer_store_dwordx2 %s, v40, %s, s%d offen offset:%d" % (vr(i, 2), SRD_W, sT, i * 4))
a("L_end:")
a("s_endpgm")
a("L_rescale:")
a("v_mov_b32 v%d, v%d" % (T0, TMAX))
a("v_permlane32_swap_b32 v%d, v%d" % (T0, TMAX))
a("v_max3_f32 v%d, v%d, v%d, 0" % (T0, TMAX, T0))
a("v_sub_f32 v%d, 0, v%d" % (T0 + 1, T0))
a("v_exp_f32 v%d, v%d" % (T0 + 1, T0 + 1))
a("v_sub_f32 v%d, v%d, v%d" % (NEGMC, NEGMC, T0))
for r in range(16):
    a("v_sub_f32 %s, %s, v%d" % (S(r), S(r), T0))
a("v_mul_f32 v%d, v%d, v%d" % (VL, T0 + 1, VL))
for r in range(64):
    a("v_mul_f32 v%d, v%d, v%d" % (OA + r, T0 + 1, OA + r))
a("s_setpc_b64 s[%d:%d]" % (sRET, sRET + 1))

body = a.finish()
hdr = open("cdna_kernels/%s.s.ref" % NAME).read().split("\n")
head = [l for l in hdr if l.startswith(";") and "@launch" not in l]
txt = "\n".join(head) + "\n"
txt += "; @launch grid=(256,1,1) block=(512,1,1) lds=163840\n"
txt += """.amdgcn_target "amdgcn-amd-amdhsa--gfx950"
.text
.globl {n}_kernel
.p2align 8
.type {n}_kernel,@function
{n}_kernel:
""".format(n=NAME)
txt += body
txt += """.section .rodata,"a"
.p2align 6
.amdhsa_kernel {n}_kernel
  .amdhsa_next_free_vgpr 256
  .amdhsa_next_free_sgpr 102
  .amdhsa_accum_offset 256
  .amdhsa_group_segment_fixed_size 0
  .amdhsa_kernarg_size 48
  .amdhsa_user_sgpr_count 2
  .amdhsa_user_sgpr_kernarg_segment_ptr 1
  .amdhsa_system_sgpr_workgroup_id_x 1
.end_amdhsa_kernel
""".format(n=NAME)
open(OUT, "w").write(txt)
print("wrote", OUT, "instrs", len(a.ins), "nops", a.nnops, "stamps", nstamp[0])
```
